```python
import torch

def _softmax(x, axis=-1):
    return torch.softmax(x, dim=axis)
def _gelu(x):
    return torch.nn.functional.gelu(x, approximate="tanh")
def _silu(x):
    return torch.nn.functional.silu(x)
def _sigmoid(x):
    return torch.sigmoid(x)
def _layernorm(x, axis=-1, eps=1e-5):
    m = x.mean(dim=axis, keepdim=True)
    v = x.var(dim=axis, keepdim=True, unbiased=False)
    return (x - m) / torch.sqrt(v + eps)
def _scatter_add(tgt, idx, src, axis=0):
    return tgt.clone().index_add_(axis, idx, src)
def _segment_sum(src, seg, n):
    out = torch.zeros((n,) + src.shape[1:], dtype=src.dtype)
    return out.index_add_(0, seg, src)
def _pad(x, pw):
    flat = tuple(v for pair in reversed(pw) for v in pair)
    return torch.nn.functional.pad(x, flat)

kernel_name = 'standalone__gqa_softmax__near_ridge'

def setup_inputs():

    _w = (lambda a: (lambda t: t.to(torch.bfloat16) if t.is_floating_point() else t)(torch.as_tensor(a)))
    B, Hq, Hkv, Sq, Sk, D = 8, 32, 8, 320, 320, 128
    return {
        "q": _w((lambda *s: torch.randn(*s, dtype=torch.bfloat16) * 0.8)(B, Hq, Sq, D)),
        "k": _w((lambda *s: torch.randn(*s, dtype=torch.bfloat16) * 0.8)(B, Hkv, Sk, D)),
        "v": _w((lambda *s: torch.randn(*s, dtype=torch.bfloat16) * 0.05)(B, Hkv, Sk, D)),
    }

def reference(q, k, v):
    B, Hq, Sq, D = q.shape
    Hkv = k.shape[1]
    rep = Hq // Hkv
    k = (lambda x, n, axis: torch.repeat_interleave(x, n, dim=axis))(k, rep, axis=1)
    v = (lambda x, n, axis: torch.repeat_interleave(x, n, dim=axis))(v, rep, axis=1)
    scale = D ** -0.5
    scores = torch.einsum("bhqd,bhkd->bhqk", q, k) * scale
    p = _softmax(scores, axis=-1)
    return torch.einsum("bhqk,bhkd->bhqd", p, v)
```

```python
import struct, sys, math

OUT = "standalone__gqa_softmax__near_ridge.s"

def f32hex(x):
    return "0x%08x" % struct.unpack("<I", struct.pack("<f", x))[0]

def vr(a, n):
    return "v%d" % a if n == 1 else "v[%d:%d]" % (a, a + n - 1)

class Ins:
    __slots__ = ("text", "kind", "reads", "writes", "srcc", "q", "units", "preds", "pos", "idx", "raw")
    def __init__(self, text, kind, reads=(), writes=(), srcc=(), q="V", units=1):
        self.text = text; self.kind = kind
        self.reads = list(reads); self.writes = list(writes); self.srcc = list(srcc)
        self.q = q; self.units = units; self.preds = []; self.pos = None; self.raw = []

def R(a, n=1):
    return list(range(a, a + n))

MF = ("mfma32", "mfma16")
def mf_lat(kind):
    return 12 if kind == "mfma32" else 8

class Prog:
    def __init__(self):
        self.ins = []
    def add(self, i):
        self.ins.append(i); return i
    def valu(self, text, reads, writes, q="V"):
        return self.add(Ins(text, "valu", reads, writes, q=q))
    def trans(self, text, reads, writes, q="V"):
        return self.add(Ins(text, "trans", reads, writes, q=q, units=2))
    def perm(self, text, regs, q="V"):
        return self.add(Ins(text, "perm", regs, regs, q=q))
    def mfma(self, big, d, a, b, first):
        n = 16 if big else 4
        name = "v_mfma_f32_32x32x16_bf16" if big else "v_mfma_f32_16x16x32_bf16"
        c = "0" if first else vr(d, n)
        reads = R(a, 4) + R(b, 4) + ([] if first else R(d, n))
        return self.add(Ins("%s %s, %s, %s, %s" % (name, vr(d, n), vr(a, 4), vr(b, 4), c),
                            "mfma32" if big else "mfma16", reads, R(d, n),
                            srcc=([] if first else R(d, n)), q="M"))
    def dsr128(self, d, addr, off, tok):
        return self.add(Ins("ds_read_b128 %s, v%d offset:%d" % (vr(d, 4), addr, off), "dsr",
                            [addr, tok], R(d, 4), q="M"))
    def dstr(self, d, addr, off, tok):
        return self.add(Ins("ds_read_b64_tr_b16 %s, v%d offset:%d" % (vr(d, 2), addr, off), "dsr",
                            [addr, tok], R(d, 2), q="M"))
    def sync(self, text, tok):
        return self.add(Ins(text, "sync", [], [tok], q="M"))
    def store4(self, d, addr, off):
        return self.add(Ins("buffer_store_dwordx4 %s, v%d, s[24:27], s30 offen offset:%d" % (vr(d, 4), addr, off),
                            "store", R(d, 4) + [addr], [], q="V"))

    def build_dag(self):
        lastw = {}; readers = {}
        for k, i in enumerate(self.ins):
            i.idx = k
            ps = set()
            for r in i.reads:
                if r in lastw:
                    ps.add(lastw[r]); i.raw.append(lastw[r])
            for w in i.writes:
                if w in lastw: ps.add(lastw[w])
                for rd in readers.get(w, ()): ps.add(rd)
            ps.discard(i)
            i.preds = list(ps)
            for r in i.reads:
                readers.setdefault(r, []).append(i)
            for w in i.writes:
                lastw[w] = i; readers[w] = []

    def schedule(self, nv, order=None):
        self.build_dag()
        M = [i for i in self.ins if i.q == "M"]
        V = [i for i in self.ins if i.q == "V"]
        out = []
        def dag_ready(i):
            return all(p.pos is not None for p in i.preds)
        def lat_ready(i):
            for p in i.raw:
                if p.kind in MF and i.kind not in MF:
                    if len(out) - p.pos - 1 < mf_lat(p.kind) + 2: return False
            return True
        def emit(i):
            i.pos = len(out); out.append(i)
        mi = vi = 0
        while mi < len(M) or vi < len(V):
            prog = False
            while mi < len(M) and dag_ready(M[mi]):
                i = M[mi]; mi += 1; emit(i); prog = True
                if i.kind in MF: break
            budget = nv
            while vi < len(V) and budget > 0 and dag_ready(V[vi]):
                m_ok = mi < len(M) and dag_ready(M[mi])
                if m_ok and not lat_ready(V[vi]): break
                i = V[vi]; vi += 1; emit(i); prog = True
                budget -= i.units
            assert prog, "scheduler stuck"
        return out

def insert_waits(seq):
    out = []; pend = []
    for i in seq:
        touched = set(i.reads) | set(i.writes)
        need = -1
        for k, regs in enumerate(pend):
            if regs & touched: need = k
        if i.kind == "sync":
            pass
        if need >= 0:
            left = len(pend) - (need + 1)
            out.append(Ins("s_waitcnt lgkmcnt(%d)" % min(left, 15), "wait"))
            pend = pend[need + 1:]
        out.append(i)
        if i.kind == "dsr":
            pend.append(set(i.writes))
    return out

def insert_nops(seq):
    out = []; pos = 0
    lastw = {}
    lastc = {}
    lastst = {}
    for i in seq:
        need = 0
        def req(p, ws):
            nonlocal need
            d = pos - p - 1
            if ws - d > need: need = ws - d
        ismf = i.kind in MF
        isv = i.kind in ("valu", "trans", "perm")
        for r in i.reads:
            if not isinstance(r, int) or r not in lastw: continue
            p, pi = lastw[r]
            if pi.kind in ("valu", "trans", "perm"):
                if ismf: req(p, 2)
                elif i.kind == "perm": req(p, 2)
                elif pi.kind == "trans" and i.kind == "valu": req(p, 1)
                elif pi.kind == "trans": req(p, 1)
            elif pi.kind in MF:
                if ismf:
                    if r in i.srcc and pi.kind == i.kind and pi.writes == i.srcc:
                        pass
                    elif r in i.srcc:
                        req(p, 10 if pi.kind == "mfma32" else 6)
                    else:
                        req(p, mf_lat(pi.kind))
                else:
                    req(p, mf_lat(pi.kind))
        for w in i.writes:
            if not isinstance(w, int): continue
            if w in lastw:
                p, pi = lastw[w]
                if pi.kind in MF:
                    if ismf:
                        if not (pi.kind == i.kind and pi.writes == i.writes):
                            req(p, 10 if pi.kind == "mfma32" else 6)
                    else:
                        req(p, mf_lat(pi.kind))
            if w in lastc and not ismf:
                p, pi = lastc[w]
                req(p, 7 if pi.kind == "mfma32" else 3)
            if w in lastst:
                req(lastst[w], 2)
        if need > 0:
            while need > 0:
                n = min(need, 16)
                out.append(Ins("s_nop %d" % (n - 1), "nop")); pos += n; need -= n
        out.append(i)
        for w in i.writes:
            if isinstance(w, int): lastw[w] = (pos, i)
        for c in i.srcc: lastc[c] = (pos, i)
        if i.kind == "store":
            for r in i.reads: lastst[r] = pos
        pos += 1
    return out

KA32 = 8; VA32 = 16; OA32 = 20
M0, M1, NEG, ALPHA, LA, LB, T0, T1, RCP = 21, 22, 23, 24, 25, 26, 27, 28, 29
FR = [32, 36, 40, 44, 48, 52]
QF32 = 56; S0 = 88; S1 = 168
O32 = [56, 72, 136, 152]
QF16 = 88; S0_16 = 104; S1_16 = 144; O16 = 184
KA16 = 216; VA16 = 220; OA16 = 228
FR16 = [32, 36, 40, 44, 48, 52, 232, 236, 240, 244]
SC = "s28"; SNC = "s29"

lbl = [0]
def sync_text(vm, cond):
    if not cond:
        return "s_waitcnt vmcnt(%d)\n    s_barrier" % vm
    lbl[0] += 1
    return ("s_cmp_eq_u32 s31, 0\n    s_cbranch_scc1 L_skip%d\n    s_waitcnt vmcnt(%d)\n    s_barrier\nL_skip%d:"
            % (lbl[0], vm, lbl[0]))

def tile(big, vmw, cond, wait_before_store=None):
    P = Prog()
    if big:
        NKT, NKS, SW = 5, 8, 16
        KA, VA, OA = KA32, VA32, OA32
        QF, SS = QF32, (S0, S1)
        NDT, NKK, OW = 4, 10, 16
        O = O32; fr = FR
        KT_OFF = 8192; KK_OFF, T_OFF = 4096, 2048
        AHEAD = 4
    else:
        NKT, NKS, SW = 10, 4, 4
        KA, VA, OA = KA16, VA16, OA16
        QF, SS = QF16, (S0_16, S1_16)
        NDT, NKK, OW = 8, 5, 4
        O = [O16 + 4 * i for i in range(8)]; fr = FR16
        KT_OFF = 4096; KK_OFF, T_OFF = 8192, 4096
        AHEAD = 8
    NS = NKT * SW
    frc = [0]
    def nextfr():
        f = fr[frc[0] % len(fr)]; frc[0] += 1; return f

    mops = []
    def qk(h):
        mops.append(("sync", vmw[h], "K%d" % h))
        if h == 1:
            mops.append(("rebase", KA, NKS))
        for kt in range(NKT):
            for ks in range(NKS):
                mops.append(("qk", h, kt, ks))
    def pv(h):
        mops.append(("sync", vmw[2 + h], "V%d" % h))
        if h == 1:
            mops.append(("rebase", VA, NDT))
        for kk in range(NKK):
            for dt in range(NDT):
                mops.append(("pv", h, kk, dt))

    qk(0); mops.append(("v", "max0")); qk(1); mops.append(("v", "sm0")); mops.append(("v", "max1"))
    pv(0); mops.append(("v", "sm1")); mops.append(("v", "resc")); pv(1); mops.append(("v", "epi"))

    mm_idx = [k for k, o in enumerate(mops) if o[0] in ("qk", "pv")]
    fragof = {}
    issued = set()
    def issue_read(k):
        o = mops[k]
        f = nextfr(); fragof[k] = f
        if o[0] == "qk":
            _, h, kt, ks = o
            P.dsr128(f, KA + ks, kt * KT_OFF, "K%d" % h)
        else:
            _, h, kk, dt = o
            P.dstr(f, VA + dt, kk * KK_OFF, "V%d" % h)
            P.dstr(f + 2, VA + dt, kk * KK_OFF + T_OFF, "V%d" % h)
        issued.add(k)
    done_ctl = set()
    def do_ctl(k):
        o = mops[k]
        if k in done_ctl: return
        done_ctl.add(k)
        if o[0] == "sync":
            P.sync(sync_text(o[1], cond), o[2])
        elif o[0] == "rebase":
            for j in range(o[2]):
                P.valu("v_add_u32 v%d, 0xa000, v%d" % (o[1] + j, o[1] + j), [o[1] + j], [o[1] + j], q="M")

    def reduce_x(x, op):
        perms = ["v_permlane32_swap_b32"] if big else ["v_permlane16_swap_b32", "v_permlane32_swap_b32"]
        for pm in perms:
            P.valu("v_mov_b32 v%d, v%d" % (T0, x), [x], [T0])
            P.perm("%s v%d, v%d" % (pm, x, T0), [x, T0])
            P.valu("%s v%d, v%d, v%d" % (op, x, x, T0), [x, T0], [x])

    def vwork(name):
        if name in ("max0", "max1"):
            h = int(name[3]); s = SS[h]; m = M0 if h == 0 else M1
            if h == 0:
                P.valu("v_max_f32 v%d, v%d, v%d" % (m, s, s + 1), [s, s + 1], [m]); st = 2
            else:
                P.valu("v_max3_f32 v%d, v%d, v%d, v%d" % (m, M0, s, s + 1), [M0, s, s + 1], [m]); st = 2
            for j in range(st, NS, 2):
                P.valu("v_max3_f32 v%d, v%d, v%d, v%d" % (m, m, s + j, s + j + 1), [m, s + j, s + j + 1], [m])
            reduce_x(m, "v_max_f32")
        elif name in ("sm0", "sm1"):
            h = int(name[2]); s = SS[h]; m = M0 if h == 0 else M1
            P.valu("v_mul_f32 v%d, %s, v%d" % (NEG, SNC, m), [m], [NEG])
            if h == 1:
                P.valu("v_fma_f32 v%d, v%d, %s, v%d" % (ALPHA, M0, SC, NEG), [M0, NEG], [ALPHA])
                P.trans("v_exp_f32 v%d, v%d" % (ALPHA, ALPHA), [ALPHA], [ALPHA])
                P.valu("v_add_f32 v%d, v%d, v%d" % (LA, LA, LB), [LA, LB], [LA])
                P.valu("v_mul_f32 v%d, v%d, v%d" % (LA, LA, ALPHA), [LA, ALPHA], [LA])
            for g in range(NS // 8):
                b = s + 8 * g
                for j in range(8):
                    P.valu("v_fma_f32 v%d, v%d, %s, v%d" % (b + j, b + j, SC, NEG), [b + j, NEG], [b + j])
                for j in range(8):
                    P.trans("v_exp_f32 v%d, v%d" % (b + j, b + j), [b + j], [b + j])
                for j in range(8):
                    acc = LA if (j & 1) == 0 else LB
                    first = (h == 0 and g == 0 and j < 2) or (h == 1 and g == 0 and j == 1)
                    if first:
                        P.valu("v_mov_b32 v%d, v%d" % (acc, b + j), [b + j], [acc])
                    else:
                        P.valu("v_add_f32 v%d, v%d, v%d" % (acc, acc, b + j), [acc, b + j], [acc])
                for j in range(4):
                    d = s + 4 * g + j
                    P.valu("v_cvt_pk_bf16_f32 v%d, v%d, v%d" % (d, b + 2 * j, b + 2 * j + 1),
                           [b + 2 * j, b + 2 * j + 1], [d])
        elif name == "resc":
            for o in O:
                for j in range(OW):
                    P.valu("v_mul_f32 v%d, v%d, v%d" % (o + j, o + j, ALPHA), [o + j, ALPHA], [o + j])
        elif name == "epi":
            P.valu("v_add_f32 v%d, v%d, v%d" % (LA, LA, LB), [LA, LB], [LA])
            reduce_x(LA, "v_add_f32")
            P.trans("v_rcp_f32 v%d, v%d" % (RCP, LA), [LA], [RCP])
            first_store = [True]
            def st(d, off):
                if first_store[0] and wait_before_store is not None:
                    P.add(Ins(wait_before_store, "wait", R(d, 4), [], q="V"))
                first_store[0] = False
                P.store4(d, OA, off)
            if big:
                for dt, o in enumerate(O):
                    for j in range(16):
                        P.valu("v_mul_f32 v%d, v%d, v%d" % (o + j, o + j, RCP), [o + j, RCP], [o + j])
                    for j in range(8):
                        P.valu("v_cvt_pk_bf16_f32 v%d, v%d, v%d" % (o + j, o + 2 * j, o + 2 * j + 1),
                               [o + 2 * j, o + 2 * j + 1], [o + j])
                    st(o, 32 * dt); st(o + 4, 32 * dt + 16)
            else:
                for u in range(4):
                    o = O[2 * u]
                    for j in range(8):
                        P.valu("v_mul_f32 v%d, v%d, v%d" % (o + j, o + j, RCP), [o + j, RCP], [o + j])
                    for j in range(4):
                        P.valu("v_cvt_pk_bf16_f32 v%d, v%d, v%d" % (o + j, o + 2 * j, o + 2 * j + 1),
                               [o + 2 * j, o + 2 * j + 1], [o + j])
                    P.perm("v_permlane16_swap_b32 v%d, v%d" % (o, o + 2), [o, o + 2])
                    P.perm("v_permlane16_swap_b32 v%d, v%d" % (o + 1, o + 3), [o + 1, o + 3])
                    st(o, 32 * u)

    nread = 0
    for pos_k, o in enumerate(mops):
        if o[0] == "v":
            vwork(o[1]); continue
        if o[0] in ("sync", "rebase"):
            do_ctl(pos_k); continue
        j = mm_idx.index(pos_k)
        while nread < len(mm_idx) and nread <= j + AHEAD:
            k = mm_idx[nread]
            for c in range(pos_k, k):
                if mops[c][0] in ("sync", "rebase"): do_ctl(c)
            issue_read(k); nread += 1
        f = fragof[pos_k]
        if o[0] == "qk":
            _, h, kt, ks = o
            P.mfma(big, SS[h] + SW * kt, f, QF + 4 * ks, ks == 0)
        else:
            _, h, kk, dt = o
            P.mfma(big, O[dt], f, SS[h] + 4 * kk, h == 0 and kk == 0)
    return P

def finish(P, nv):
    seq = P.schedule(nv)
    seq = insert_waits(seq)
    seq = insert_nops(seq)
    return seq

def main():
    NV32 = int(sys.argv[1]) if len(sys.argv) > 1 else 8
    NV16 = int(sys.argv[2]) if len(sys.argv) > 2 else 4
    c = math.log2(math.e) / math.sqrt(128.0)
    L = []
    A = L.append
    hdr = open("standalone__gqa_softmax__near_ridge.s.ref").read().split("\n")
    for line in hdr:
        if line.startswith("; @launch"):
            A("; @launch grid=(256,1,1) block=(512,1,1) lds=163840")
        elif line.startswith(";"):
            A(line)
        else:
            break
    A('.amdgcn_target "amdgcn-amd-amdhsa--gfx950"')
    A(".text")
    A(".globl standalone__gqa_softmax__near_ridge_kernel")
    A(".p2align 8")
    A(".type standalone__gqa_softmax__near_ridge_kernel,@function")
    A("standalone__gqa_softmax__near_ridge_kernel:")
    pro = """
    s_cmp_ge_u32 s2, 256
    s_cbranch_scc1 L_end
    s_load_dwordx4 s[4:7], s[0:1], 0
    s_load_dwordx4 s[8:11], s[0:1], 16
    v_lshrrev_b32 v1, 6, v0
    v_and_b32 v0, 63, v0
    s_nop 0
    v_readfirstlane_b32 s32, v1            ; wave id
    ; workgroup -> (group, head)
    s_and_b32 s33, s2, 7
    s_lshr_b32 s34, s2, 3
    s_lshl_b32 s33, s33, 3
    s_lshr_b32 s35, s34, 2
    s_add_u32 s33, s33, s35                ; kv group
    s_and_b32 s34, s34, 3
    s_lshl_b32 s35, s33, 2
    s_add_u32 s35, s35, s34                ; q head
    s_mul_i32 s30, s35, 81920              ; q/out head byte offset
    s_mul_i32 s36, s33, 81920              ; kv byte offset
    s_mov_b32 s28, %s
    s_mov_b32 s29, %s
    s_and_b32 s37, s32, 3                  ; simd slot
    s_mul_i32 s38, s37, 80                 ; row base
    s_lshr_b32 s31, s32, 2                 ; 1 for B waves (w>=4): T32 with barriers
    ; T32 row0: B -> 80s ; A -> 80s+32
    s_lshl_b32 s39, s31, 5
    s_sub_u32 s39, 32, s39
    s_add_u32 s39, s39, s38                ; T32 row0
    s_add_u32 s40, s38, 64                 ; T16 row0
    ; lane decompositions
    v_and_b32 v1, 31, v0                   ; r32
    v_lshrrev_b32 v2, 5, v0                ; h
    v_and_b32 v3, 15, v0                   ; r16
    v_lshrrev_b32 v4, 4, v0                ; g (0..3)
    v_lshrrev_b32 v5, 2, v0
    v_and_b32 v5, 3, v5                    ; r4
    v_and_b32 v6, 3, v0                    ; c
    ; ---- KA32
    v_xor_b32 v7, v2, v3
    v_lshlrev_b32 v7, 4, v7
    v_lshl_or_b32 v8, v1, 8, v7
    v_xor_b32 v9, 32, v8
    v_xor_b32 v10, 64, v8
    v_xor_b32 v11, 0x60, v8
    v_xor_b32 v12, 0x80, v8
    v_xor_b32 v13, 0xa0, v8
    v_xor_b32 v14, 0xc0, v8
    v_xor_b32 v15, 0xe0, v8
    ; ---- VA32: 81920 + (4h+r4)*256 + (8(c&1) + 2 r4 + (g'^h))*16 + 8(c>>1)
    v_lshl_add_u32 v7, v2, 2, v5           ; 4h+r4
    v_lshlrev_b32 v7, 8, v7
    v_and_b32 v16, 1, v6
    v_lshlrev_b32 v16, 3, v16
    v_lshl_add_u32 v16, v5, 1, v16
    v_and_b32 v17, 1, v4
    v_xor_b32 v17, v17, v2
    v_add_u32 v16, v16, v17
    v_lshl_add_u32 v7, v16, 4, v7
    v_lshrrev_b32 v16, 1, v6
    v_lshl_add_u32 v7, v16, 3, v7
    v_add_u32 v16, 0x14000, v7
    v_xor_b32 v17, 32, v16
    v_xor_b32 v18, 64, v16
    v_xor_b32 v19, 0x60, v16
    ; ---- OA32 = (row0+r)*256 + 128h ; Q32 voffset = (row0+r)*256 + 16h
    v_add_u32 v7, s39, v1
    v_lshlrev_b32 v7, 8, v7
    v_lshl_add_u32 v20, v2, 7, v7
    v_lshl_add_u32 v21, v2, 4, v7
    ; ---- KA16 = ((r<<8) | ((g^r)<<4)) ^ (ks<<6)
    v_xor_b32 v7, v4, v3
    v_lshlrev_b32 v7, 4, v7
    v_lshl_or_b32 v216, v3, 8, v7
    v_xor_b32 v217, 64, v216
    v_xor_b32 v218, 0x80, v216
    v_xor_b32 v219, 0xc0, v216
    ; ---- VA16: 81920 + (4g+r4)*256 + (8c1 | 2 r4 | (g&1))*16 + 8 c0
    v_lshl_add_u32 v7, v4, 2, v5
    v_lshlrev_b32 v7, 8, v7
    v_lshrrev_b32 v220, 1, v6
    v_lshlrev_b32 v220, 3, v220
    v_lshl_add_u32 v220, v5, 1, v220
    v_and_b32 v221, 1, v4
    v_add_u32 v220, v220, v221
    v_lshl_add_u32 v7, v220, 4, v7
    v_and_b32 v220, 1, v6
    v_lshl_add_u32 v7, v220, 3, v7
    v_add_u32 v220, 0x14000, v7
    v_xor_b32 v221, 16, v220
    v_xor_b32 v222, 32, v220
    v_xor_b32 v223, 48, v220
    v_xor_b32 v224, 64, v220
    v_xor_b32 v225, 0x50, v220
    v_xor_b32 v226, 0x60, v220
    v_xor_b32 v227, 0x70, v220
    ; ---- OA16 = (row0+r)*256 + 128(g>>1) + 16(g&1); Q16 voffset = (row0+r)*256 + 16 g
    v_add_u32 v7, s40, v3
    v_lshlrev_b32 v7, 8, v7
    v_lshl_add_u32 v22, v4, 4, v7
    v_lshrrev_b32 v228, 1, v4
    v_lshl_add_u32 v228, v228, 7, v7
    v_and_b32 v229, 1, v4
    v_lshl_add_u32 v228, v229, 4, v228
    ; ---- DMA voffsets:  KD=v23  VD=v24
    s_lshl_b32 s41, s37, 2
    v_add_u32 v7, s41, v4                  ; 4(w&3)+(i>>4)
    v_xor_b32 v7, v7, v3
    v_lshlrev_b32 v7, 4, v7
    v_lshl_or_b32 v23, v4, 8, v7
    s_and_b32 s41, s32, 1
    v_lshlrev_b32 v7, 1, v4
    v_or_b32 v7, s41, v7
    v_xor_b32 v7, v7, v3
    v_lshlrev_b32 v7, 4, v7
    v_lshl_or_b32 v24, v4, 8, v7
    s_waitcnt lgkmcnt(0)
    s_mov_b32 s12, s4
    s_and_b32 s13, s5, 0xffff
    s_mov_b32 s14, 20971520
    s_mov_b32 s15, 0x00020000
    s_mov_b32 s16, s6
    s_and_b32 s17, s7, 0xffff
    s_mov_b32 s18, 5242880
    s_mov_b32 s19, 0x00020000
    s_mov_b32 s20, s8
    s_and_b32 s21, s9, 0xffff
    s_mov_b32 s22, 5242880
    s_mov_b32 s23, 0x00020000
    s_mov_b32 s24, s10
    s_and_b32 s25, s11, 0xffff
    s_mov_b32 s26, 20971520
    s_mov_b32 s27, 0x00020000
    s_lshl_b32 s42, s32, 10                ; lds offset = 1024 w
    s_add_u32 s43, s36, s42                ; global offset
    s_cmp_eq_u32 s31, 0
    s_cbranch_scc1 L_ldA
""" % (f32hex(c), f32hex(-c))
    A(pro)
    for ks in range(8):
        A("    buffer_load_dwordx4 v[%d:%d], v21, s[12:15], s30 offen offset:%d" % (QF32 + 4 * ks, QF32 + 4 * ks + 3, 32 * ks))
    A("    s_branch L_ldKV")
    A("L_ldA:")
    for ks in range(4):
        A("    buffer_load_dwordx4 v[%d:%d], v22, s[12:15], s30 offen offset:%d" % (QF16 + 4 * ks, QF16 + 4 * ks + 3, 64 * ks))
    A("L_ldKV:")
    for n in range(10):
        A("    s_add_u32 s44, s42, %d" % (8192 * n))
        A("    s_mov_b32 m0, s44")
        A("    s_add_u32 s45, s43, %d" % (8192 * n))
        A("    buffer_load_dwordx4 v23, s[16:19], s45 offen lds")
    for n in range(10):
        A("    s_add_u32 s44, s42, %d" % (81920 + 8192 * n))
        A("    s_mov_b32 m0, s44")
        A("    s_add_u32 s45, s43, %d" % (8192 * n))
        A("    buffer_load_dwordx4 v24, s[20:23], s45 offen lds")
    A("    s_cmp_eq_u32 s31, 1")
    A("    s_cbranch_scc1 L_T32")
    for ks in range(8):
        A("    buffer_load_dwordx4 v[%d:%d], v21, s[12:15], s30 offen offset:%d" % (QF32 + 4 * ks, QF32 + 4 * ks + 3, 32 * ks))
    P16 = tile(False, [23, 18, 13, 8], False, wait_before_store="s_waitcnt vmcnt(0)")
    seq16 = finish(P16, NV16)
    for i in seq16: A("    " + i.text)
    A("    s_nop 7")
    A("L_T32:")
    P32 = tile(True, [15, 10, 5, 0], True)
    seq32 = finish(P32, NV32)
    for i in seq32: A("    " + i.text)
    A("L_end:")
    A("    s_endpgm")
    A('.section .rodata,"a"')
    A(".p2align 6")
    A(".amdhsa_kernel standalone__gqa_softmax__near_ridge_kernel")
    A("  .amdhsa_next_free_vgpr 256")
    A("  .amdhsa_next_free_sgpr 64")
    A("  .amdhsa_accum_offset 256")
    A("  .amdhsa_group_segment_fixed_size 0")
    A("  .amdhsa_kernarg_size 48")
    A("  .amdhsa_user_sgpr_count 2")
    A("  .amdhsa_user_sgpr_kernarg_segment_ptr 1")
    A("  .amdhsa_system_sgpr_workgroup_id_x 1")
    A(".end_amdhsa_kernel")
    open(OUT, "w").write("\n".join(L) + "\n")
    def stat(seq):
        from collections import Counter
        return Counter(i.kind for i in seq)
    print("T16", stat(seq16)); print("T32", stat(seq32))

main()
```

```python
import struct, sys, math

import os
OUT = os.environ.get("OUT", "standalone__gqa_softmax__near_ridge.s")

def f32hex(x):
    return "0x%08x" % struct.unpack("<I", struct.pack("<f", x))[0]

def vr(a, n):
    return "v%d" % a if n == 1 else "v[%d:%d]" % (a, a + n - 1)

class Ins:
    __slots__ = ("text", "kind", "reads", "writes", "srcc", "q", "units", "preds", "pos", "idx", "raw")
    def __init__(self, text, kind, reads=(), writes=(), srcc=(), q="V", units=1):
        self.text = text; self.kind = kind
        self.reads = list(reads); self.writes = list(writes); self.srcc = list(srcc)
        self.q = q; self.units = units; self.preds = []; self.pos = None; self.raw = []

def R(a, n=1):
    return list(range(a, a + n))

MF = ("mfma32", "mfma16")
def mf_lat(kind):
    return 12 if kind == "mfma32" else 8

class Prog:
    def __init__(self):
        self.ins = []
    def add(self, i):
        self.ins.append(i); return i
    def valu(self, text, reads, writes, q="V"):
        return self.add(Ins(text, "valu", reads, writes, q=q))
    def trans(self, text, reads, writes, q="V"):
        return self.add(Ins(text, "trans", reads, writes, q=q, units=2))
    def perm(self, text, regs, q="V"):
        return self.add(Ins(text, "perm", regs, regs, q=q))
    def mfma(self, big, d, a, b, first):
        n = 16 if big else 4
        name = "v_mfma_f32_32x32x16_bf16" if big else "v_mfma_f32_16x16x32_bf16"
        c = "0" if first else vr(d, n)
        reads = R(a, 4) + R(b, 4) + ([] if first else R(d, n))
        return self.add(Ins("%s %s, %s, %s, %s" % (name, vr(d, n), vr(a, 4), vr(b, 4), c),
                            "mfma32" if big else "mfma16", reads, R(d, n),
                            srcc=([] if first else R(d, n)), q="M"))
    def dsr128(self, d, addr, off, tok):
        return self.add(Ins("ds_read_b128 %s, v%d offset:%d" % (vr(d, 4), addr, off), "dsr",
                            [addr, tok], R(d, 4), q="M"))
    def dstr(self, d, addr, off, tok):
        return self.add(Ins("ds_read_b64_tr_b16 %s, v%d offset:%d" % (vr(d, 2), addr, off), "dsr",
                            [addr, tok], R(d, 2), q="M"))
    def sync(self, text, tok):
        return self.add(Ins(text, "sync", [], [tok], q="M"))
    def store4(self, d, addr, off):
        return self.add(Ins("buffer_store_dwordx4 %s, v%d, s[24:27], s30 offen offset:%d" % (vr(d, 4), addr, off),
                            "store", R(d, 4) + [addr], [], q="V"))

    def build_dag(self):
        lastw = {}; readers = {}
        for k, i in enumerate(self.ins):
            i.idx = k
            ps = set()
            for r in i.reads:
                if r in lastw:
                    ps.add(lastw[r]); i.raw.append(lastw[r])
            for w in i.writes:
                if w in lastw: ps.add(lastw[w])
                for rd in readers.get(w, ()): ps.add(rd)
            ps.discard(i)
            i.preds = list(ps)
            for r in i.reads:
                readers.setdefault(r, []).append(i)
            for w in i.writes:
                lastw[w] = i; readers[w] = []

    def schedule(self, nv, order=None):
        self.build_dag()
        M = [i for i in self.ins if i.q == "M"]
        V = [i for i in self.ins if i.q == "V"]
        out = []
        def dag_ready(i):
            return all(p.pos is not None for p in i.preds)
        def lat_ready(i):
            for p in i.raw:
                if p.kind in MF and i.kind not in MF:
                    if len(out) - p.pos - 1 < mf_lat(p.kind) + 2: return False
            return True
        def emit(i):
            i.pos = len(out); out.append(i)
        mi = vi = 0
        while mi < len(M) or vi < len(V):
            prog = False
            while mi < len(M) and dag_ready(M[mi]):
                i = M[mi]; mi += 1; emit(i); prog = True
                if i.kind in MF: break
            budget = nv
            while vi < len(V) and budget > 0 and dag_ready(V[vi]):
                m_ok = mi < len(M) and dag_ready(M[mi])
                if m_ok and not lat_ready(V[vi]): break
                i = V[vi]; vi += 1; emit(i); prog = True
                budget -= i.units
            assert prog, "scheduler stuck"
        return out

def insert_waits(seq, extra=0):
    out = []; pend = []
    for i in seq:
        touched = set(i.reads) | set(i.writes)
        need = -1
        for k, regs in enumerate(pend):
            if regs & touched: need = k
        if need >= 0:
            cov = 0; k = need + 1
            while k < len(pend) and cov + len(pend[k]) <= 4 * extra:
                cov += len(pend[k]); k += 1
            need = k - 1
            left = len(pend) - (need + 1)
            out.append(Ins("s_waitcnt lgkmcnt(%d)" % min(left, 15), "wait"))
            pend = pend[need + 1:]
        out.append(i)
        if i.kind == "syncd":
            pend = []
        if i.kind == "dsr":
            pend.append(set(i.writes))
    return out

def insert_nops(seq):
    out = []; pos = 0
    lastw = {}
    lastc = {}
    lastst = {}
    for i in seq:
        need = 0
        def req(p, ws):
            nonlocal need
            d = pos - p - 1
            if ws - d > need: need = ws - d
        ismf = i.kind in MF
        isv = i.kind in ("valu", "trans", "perm")
        for r in i.reads:
            if not isinstance(r, int) or r not in lastw: continue
            p, pi = lastw[r]
            if pi.kind in ("valu", "trans", "perm"):
                if ismf: req(p, 2)
                elif i.kind == "perm": req(p, 2)
                elif pi.kind == "trans" and i.kind == "valu": req(p, 1)
                elif pi.kind == "trans": req(p, 1)
            elif pi.kind in MF:
                if ismf:
                    if r in i.srcc and pi.kind == i.kind and pi.writes == i.srcc:
                        pass
                    elif r in i.srcc:
                        req(p, 10 if pi.kind == "mfma32" else 6)
                    else:
                        req(p, mf_lat(pi.kind))
                else:
                    req(p, mf_lat(pi.kind))
        for w in i.writes:
            if not isinstance(w, int): continue
            if w in lastw:
                p, pi = lastw[w]
                if pi.kind in MF:
                    if ismf:
                        if not (pi.kind == i.kind and pi.writes == i.writes):
                            req(p, 10 if pi.kind == "mfma32" else 6)
                    else:
                        req(p, mf_lat(pi.kind))
            if w in lastc and not ismf:
                p, pi = lastc[w]
                req(p, 7 if pi.kind == "mfma32" else 3)
            if w in lastst:
                req(lastst[w], 2)
        if need > 0:
            while need > 0:
                n = min(need, 16)
                out.append(Ins("s_nop %d" % (n - 1), "nop")); pos += n; need -= n
        out.append(i)
        for w in i.writes:
            if isinstance(w, int): lastw[w] = (pos, i)
        for c in i.srcc: lastc[c] = (pos, i)
        if i.kind == "store":
            for r in i.reads: lastst[r] = pos
        pos += 1
    return out

KA32 = 8; VA32 = 16; OA32 = 20
M0, M1, NEG, ALPHA, LA, LB, T0, T1, RCP = 21, 22, 23, 24, 25, 26, 27, 28, 29
FR = [32, 36, 40, 44, 48, 52]
QF32 = 56; S0 = 88; S1 = 168
O32 = [56, 72, 136, 152]
QF16L = [128, 132, 248, 252]; S0_16 = 56; S1_16 = 136; O16 = 176
KA16 = 208; VA16 = 212; OA16 = 220
FR16 = [32, 36, 40, 44, 48, 52, 224, 228, 232, 236]
OA32B = 31
SC = "s28"; SNC = "s29"

lbl = [0]
import os
STAMP = int(os.environ.get("STAMP", "0"))
stampn = [0]
def stamp():
    if not STAMP: return ""
    k = stampn[0]; stampn[0] += 1
    return "\n    s_memtime s[%d:%d]\n    s_waitcnt lgkmcnt(0)" % (64 + 2 * k, 65 + 2 * k)
def sync_text(vm, cond, post=""):
    body = "s_waitcnt vmcnt(%d)\n    s_barrier%s" % (vm, post)
    if not cond:
        return body + stamp()
    lbl[0] += 1
    return ("s_cmp_eq_u32 s31, 0\n    s_cbranch_scc1 L_skip%d\n    %s\nL_skip%d:" % (lbl[0], body, lbl[0])) + stamp()

def tile(big, vmw, cond, post=("", "", "", ""), postw=((), (), (), ())):
    P = Prog()
    if big:
        NKT, NKS, SW = 5, 8, 16
        KA, VA, OA = KA32, VA32, OA32
        QFL, SS = [QF32 + 4 * i for i in range(8)], (S0, S1)
        NDT, NKK, OW = 4, 10, 16
        O = O32; fr = FR
        KT_OFF = 8192; KK_OFF, T_OFF = 4096, 2048
        AHEAD = 4
    else:
        NKT, NKS, SW = 10, 4, 4
        KA, VA, OA = KA16, VA16, OA16
        QFL, SS = QF16L, (S0_16, S1_16)
        NDT, NKK, OW = 8, 5, 4
        O = [O16 + 4 * i for i in range(8)]; fr = FR16
        KT_OFF = 4096; KK_OFF, T_OFF = 8192, 4096
        AHEAD = 8
    NS = NKT * SW
    frc = [0]
    def nextfr():
        f = fr[frc[0] % len(fr)]; frc[0] += 1; return f

    mops = []
    def qk(h):
        if vmw: mops.append(("sync", vmw[h], "K%d" % h, post[h], postw[h]))
        if h == 1:
            mops.append(("rebase", KA, NKS))
        for kt in range(NKT):
            for ks in range(NKS):
                mops.append(("qk", h, kt, ks))
    def pv(h):
        if vmw: mops.append(("sync", vmw[2 + h], "V%d" % h, post[2 + h], postw[2 + h]))
        if h == 1:
            mops.append(("rebase", VA, NDT))
        for kk in range(NKK):
            for dt in range(NDT):
                mops.append(("pv", h, kk, dt))

    qk(0); mops.append(("v", "max0")); qk(1); mops.append(("v", "sm0")); mops.append(("v", "max1"))
    pv(0); mops.append(("v", "sm1")); mops.append(("v", "resc")); pv(1); mops.append(("v", "epi"))

    mm_idx = [k for k, o in enumerate(mops) if o[0] in ("qk", "pv")]
    fragof = {}
    issued = set()
    def issue_read(k):
        o = mops[k]
        f = nextfr(); fragof[k] = f
        if o[0] == "qk":
            _, h, kt, ks = o
            P.dsr128(f, KA + ks, kt * KT_OFF, "K%d" % h)
        else:
            _, h, kk, dt = o
            P.dstr(f, VA + dt, kk * KK_OFF, "V%d" % h)
            P.dstr(f + 2, VA + dt, kk * KK_OFF + T_OFF, "V%d" % h)
        issued.add(k)
    done_ctl = set()
    def do_ctl(k):
        o = mops[k]
        if k in done_ctl: return
        done_ctl.add(k)
        if o[0] == "sync":
            si = P.sync(sync_text(o[1], cond, o[3]), o[2])
            si.writes = si.writes + list(o[4])
        elif o[0] == "rebase":
            for j in range(o[2]):
                P.valu("v_add_u32 v%d, 0xa000, v%d" % (o[1] + j, o[1] + j), [o[1] + j], [o[1] + j], q="M")

    def reduce_x(x, op):
        perms = ["v_permlane32_swap_b32"] if big else ["v_permlane16_swap_b32", "v_permlane32_swap_b32"]
        for pm in perms:
            P.valu("v_mov_b32 v%d, v%d" % (T0, x), [x], [T0])
            P.perm("%s v%d, v%d" % (pm, x, T0), [x, T0])
            P.valu("%s v%d, v%d, v%d" % (op, x, x, T0), [x, T0], [x])

    def vwork(name):
        if name in ("max0", "max1"):
            h = int(name[3]); s = SS[h]; m = M0 if h == 0 else M1
            if h == 0:
                P.valu("v_max_f32 v%d, v%d, v%d" % (m, s, s + 1), [s, s + 1], [m]); st = 2
            else:
                P.valu("v_max3_f32 v%d, v%d, v%d, v%d" % (m, M0, s, s + 1), [M0, s, s + 1], [m]); st = 2
            for j in range(st, NS, 2):
                P.valu("v_max3_f32 v%d, v%d, v%d, v%d" % (m, m, s + j, s + j + 1), [m, s + j, s + j + 1], [m])
            reduce_x(m, "v_max_f32")
        elif name in ("sm0", "sm1"):
            h = int(name[2]); s = SS[h]; m = M0 if h == 0 else M1
            P.valu("v_mul_f32 v%d, %s, v%d" % (NEG, SNC, m), [m], [NEG])
            if h == 1:
                P.valu("v_fma_f32 v%d, v%d, %s, v%d" % (ALPHA, M0, SC, NEG), [M0, NEG], [ALPHA])
                P.trans("v_exp_f32 v%d, v%d" % (ALPHA, ALPHA), [ALPHA], [ALPHA])
                P.valu("v_add_f32 v%d, v%d, v%d" % (LA, LA, LB), [LA, LB], [LA])
                P.valu("v_mul_f32 v%d, v%d, v%d" % (LA, LA, ALPHA), [LA, ALPHA], [LA])
            for g in range(NS // 8):
                b = s + 8 * g
                for j in range(8):
                    P.valu("v_fma_f32 v%d, v%d, %s, v%d" % (b + j, b + j, SC, NEG), [b + j, NEG], [b + j])
                for j in range(8):
                    P.trans("v_exp_f32 v%d, v%d" % (b + j, b + j), [b + j], [b + j])
                for j in range(8):
                    acc = LA if (j & 1) == 0 else LB
                    first = (h == 0 and g == 0 and j < 2) or (h == 1 and g == 0 and j == 1)
                    if first:
                        P.valu("v_mov_b32 v%d, v%d" % (acc, b + j), [b + j], [acc])
                    else:
                        P.valu("v_add_f32 v%d, v%d, v%d" % (acc, acc, b + j), [acc, b + j], [acc])
                for j in range(4):
                    d = s + 4 * g + j
                    P.valu("v_cvt_pk_bf16_f32 v%d, v%d, v%d" % (d, b + 2 * j, b + 2 * j + 1),
                           [b + 2 * j, b + 2 * j + 1], [d])
        elif name == "resc":
            for o in O:
                for j in range(OW):
                    P.valu("v_mul_f32 v%d, v%d, v%d" % (o + j, o + j, ALPHA), [o + j, ALPHA], [o + j])
        elif name == "epi":
            P.valu("v_add_f32 v%d, v%d, v%d" % (LA, LA, LB), [LA, LB], [LA])
            reduce_x(LA, "v_add_f32")
            P.trans("v_rcp_f32 v%d, v%d" % (RCP, LA), [LA], [RCP])
            def cv(o, n):
                for j in range(2 * n):
                    P.valu("v_mul_f32 v%d, v%d, v%d" % (o + j, o + j, RCP), [o + j, RCP], [o + j])
                for j in range(n):
                    P.valu("v_cvt_pk_bf16_f32 v%d, v%d, v%d" % (o + j, o + 2 * j, o + 2 * j + 1),
                           [o + 2 * j, o + 2 * j + 1], [o + j])
            if big:
                for e in range(2):
                    oa, ob = O[2 * e], O[2 * e + 1]
                    cv(oa, 8); cv(ob, 8)
                    for o in (oa, ob):
                        for j in range(4):
                            P.perm("v_permlane32_swap_b32 v%d, v%d" % (o + j, o + 4 + j), [o + j, o + 4 + j])
                    for j in range(8):
                        P.perm("v_permlane16_swap_b32 v%d, v%d" % (oa + j, ob + j), [oa + j, ob + j])
                    P.store4(oa, OA, 64 * e); P.store4(ob, OA32B, 64 * e)
                    P.store4(oa + 4, OA, 128 + 64 * e); P.store4(ob + 4, OA32B, 128 + 64 * e)
            else:
                for e in range(2):
                    ws = []
                    for u in (2 * e, 2 * e + 1):
                        o = O[2 * u]
                        cv(o, 4)
                        P.perm("v_permlane16_swap_b32 v%d, v%d" % (o, o + 2), [o, o + 2])
                        P.perm("v_permlane16_swap_b32 v%d, v%d" % (o + 1, o + 3), [o + 1, o + 3])
                        ws.append(o)
                    for j in range(4):
                        P.perm("v_permlane32_swap_b32 v%d, v%d" % (ws[0] + j, ws[1] + j), [ws[0] + j, ws[1] + j])
                    P.store4(ws[0], OA, 64 * e); P.store4(ws[1], OA, 128 + 64 * e)

    nread = 0
    for pos_k, o in enumerate(mops):
        if o[0] == "v":
            vwork(o[1]); continue
        if o[0] in ("sync", "rebase"):
            do_ctl(pos_k); continue
        j = mm_idx.index(pos_k)
        while nread < len(mm_idx) and nread <= j + AHEAD:
            k = mm_idx[nread]
            for c in range(pos_k, k):
                if mops[c][0] in ("sync", "rebase"): do_ctl(c)
            issue_read(k); nread += 1
        f = fragof[pos_k]
        if o[0] == "qk":
            _, h, kt, ks = o
            P.mfma(big, SS[h] + SW * kt, f, QFL[ks], ks == 0)
        else:
            _, h, kk, dt = o
            P.mfma(big, O[dt], f, SS[h] + 4 * kk, h == 0 and kk == 0)
    return P

def finish(P, nv, extra=0):
    seq = P.schedule(nv)
    seq = insert_waits(seq, extra)
    seq = insert_nops(seq)
    return seq

def main():
    NV32 = int(os.environ.get("NV32", "8"))
    NV16 = int(os.environ.get("NV16", "4"))
    QA_AT = int(os.environ.get("QA_AT", "2"))
    c = math.log2(math.e) / math.sqrt(128.0)
    L = []
    A = L.append
    hdr = open("standalone__gqa_softmax__near_ridge.s.ref").read().split("\n")
    for line in hdr:
        if line.startswith("; @launch"):
            A("; @launch grid=(256,1,1) block=(512,1,1) lds=163840")
        elif line.startswith(";"):
            A(line)
        else:
            break
    A('.amdgcn_target "amdgcn-amd-amdhsa--gfx950"')
    A(".text")
    A(".globl standalone__gqa_softmax__near_ridge_kernel")
    A(".p2align 8")
    A(".type standalone__gqa_softmax__near_ridge_kernel,@function")
    A("standalone__gqa_softmax__near_ridge_kernel:")
    lanedec = """
    v_and_b32 v1, 31, v0                   ; r32
    v_lshrrev_b32 v2, 5, v0                ; h
    v_and_b32 v3, 15, v0                   ; r16
    v_lshrrev_b32 v4, 4, v0                ; g (0..3)
    v_lshrrev_b32 v5, 2, v0
    v_and_b32 v5, 3, v5                    ; r4
    v_and_b32 v6, 3, v0                    ; c
"""
    pro = """
    s_cmp_ge_u32 s2, 256
    s_cbranch_scc1 L_end
    s_load_dwordx4 s[4:7], s[0:1], 0
    s_load_dwordx4 s[8:11], s[0:1], 16
    s_load_dwordx2 s[46:47], s[0:1], 40
    v_lshrrev_b32 v1, 6, v0
    v_and_b32 v0, 63, v0
    s_nop 0
    v_readfirstlane_b32 s32, v1            ; wave id
    ; workgroup -> (group, head)
    s_and_b32 s33, s2, 7
    s_lshr_b32 s34, s2, 3
    s_lshl_b32 s33, s33, 3
    s_lshr_b32 s35, s34, 2
    s_add_u32 s33, s33, s35                ; kv group
    s_and_b32 s34, s34, 3
    s_lshl_b32 s35, s33, 2
    s_add_u32 s35, s35, s34                ; q head
    s_mul_i32 s30, s35, 81920              ; q/out head byte offset
    s_mul_i32 s36, s33, 81920              ; kv byte offset
    s_mov_b32 s28, %s
    s_mov_b32 s29, %s
    s_and_b32 s37, s32, 3                  ; simd slot
    s_mul_i32 s38, s37, 80                 ; row base
    s_lshr_b32 s31, s32, 2                 ; 1 for B waves (w>=4): T32 with barriers, then T16
    ; T32 row0: B -> 80s ; A -> 80s+32
    s_lshl_b32 s39, s31, 5
    s_sub_u32 s39, 32, s39
    s_add_u32 s39, s39, s38                ; T32 row0
    s_add_u32 s40, s38, 64                 ; T16 row0
""" % (f32hex(c), f32hex(-c)) + lanedec + """
    ; ---- DMA voffsets:  KD=v23  VD=v24
    s_lshl_b32 s41, s37, 2
    v_add_u32 v7, s41, v4                  ; 4(w&3)+(i>>4)
    v_xor_b32 v7, v7, v3
    v_lshlrev_b32 v7, 4, v7
    v_lshl_or_b32 v23, v4, 8, v7
    s_and_b32 s41, s32, 1
    v_lshlrev_b32 v7, 1, v4
    v_or_b32 v7, s41, v7
    v_xor_b32 v7, v7, v3
    v_lshlrev_b32 v7, 4, v7
    v_lshl_or_b32 v24, v4, 8, v7
    ; Q32 voffset (v21) = (row0+r)*256 + 16h
    v_add_u32 v7, s39, v1
    v_lshlrev_b32 v7, 8, v7
    v_lshl_add_u32 v21, v2, 4, v7
    ; Q16 voffset (v30) = (row0+r16)*256 + 16 g   (also OA16)
    v_add_u32 v7, s40, v3
    v_lshlrev_b32 v7, 8, v7
    v_lshl_add_u32 v30, v4, 4, v7
    s_waitcnt lgkmcnt(0)
    s_mov_b32 s12, s4
    s_and_b32 s13, s5, 0xffff
    s_mov_b32 s14, 20971520
    s_mov_b32 s15, 0x00020000
    s_mov_b32 s16, s6
    s_and_b32 s17, s7, 0xffff
    s_mov_b32 s18, 5242880
    s_mov_b32 s19, 0x00020000
    s_mov_b32 s20, s8
    s_and_b32 s21, s9, 0xffff
    s_mov_b32 s22, 5242880
    s_mov_b32 s23, 0x00020000
    s_mov_b32 s24, s10
    s_and_b32 s25, s11, 0xffff
    s_mov_b32 s26, 20971520
    s_mov_b32 s27, 0x00020000
    s_lshl_b32 s42, s32, 10                ; lds offset = 1024 w
    s_add_u32 s43, s36, s42                ; global offset
"""
    A(pro)
    if STAMP:
        A("".join("    s_mov_b64 s[%d:%d], 0\n" % (64 + 2 * k, 65 + 2 * k) for k in range(12)) + stamp())
    def q32():
        for ks in range(8):
            A("    buffer_load_dwordx4 v[%d:%d], v21, s[12:15], s30 offen offset:%d" % (QF32 + 4 * ks, QF32 + 4 * ks + 3, 32 * ks))
    def kvtxt(which, half):
        t = ""
        for n in range(5 * half, 5 * half + 5):
            t += "\n    s_add_u32 s44, s42, %d" % ((81920 if which else 0) + 8192 * n)
            t += "\n    s_mov_b32 m0, s44"
            t += "\n    s_add_u32 s45, s43, %d" % (8192 * n)
            t += "\n    buffer_load_dwordx4 v%d, s[%d:%d], s45 offen lds" % (24 if which else 23, 20 if which else 16, 23 if which else 19)
        return t
    def kvdma(which, half):
        A(kvtxt(which, half)[1:])
    A("    s_cmp_eq_u32 s31, 0")
    A("    s_cbranch_scc1 L_noq")
    q32()
    A("L_noq:")
    kvdma(0, 0); kvdma(0, 1)
    addr32 = """
    ; ---- KA32
    v_xor_b32 v7, v2, v3
    v_lshlrev_b32 v7, 4, v7
    v_lshl_or_b32 v8, v1, 8, v7
    v_xor_b32 v9, 32, v8
    v_xor_b32 v10, 64, v8
    v_xor_b32 v11, 0x60, v8
    v_xor_b32 v12, 0x80, v8
    v_xor_b32 v13, 0xa0, v8
    v_xor_b32 v14, 0xc0, v8
    v_xor_b32 v15, 0xe0, v8
    ; ---- VA32: 81920 + (4h+r4)*256 + (8(c&1) + 2 r4 + (g'^h))*16 + 8(c>>1)
    v_lshl_add_u32 v7, v2, 2, v5           ; 4h+r4
    v_lshlrev_b32 v7, 8, v7
    v_and_b32 v16, 1, v6
    v_lshlrev_b32 v16, 3, v16
    v_lshl_add_u32 v16, v5, 1, v16
    v_and_b32 v17, 1, v4
    v_xor_b32 v17, v17, v2
    v_add_u32 v16, v16, v17
    v_lshl_add_u32 v7, v16, 4, v7
    v_lshrrev_b32 v16, 1, v6
    v_lshl_add_u32 v7, v16, 3, v7
    v_add_u32 v16, 0x14000, v7
    v_xor_b32 v17, 32, v16
    v_xor_b32 v18, 64, v16
    v_xor_b32 v19, 0x60, v16
    v_add_u32 v7, s39, v3
    v_lshlrev_b32 v7, 8, v7
    v_and_b32 v20, 1, v4
    v_lshl_add_u32 v20, v20, 1, v2
    v_lshl_add_u32 v20, v20, 4, v7
    v_add_u32 v31, 0x1000, v20
"""
    A(addr32)
    A("    s_cmp_eq_u32 s31, 1")
    A("    s_cbranch_scc1 L_T32")
    nq = 0
    for k in range(4):
        A("    s_waitcnt vmcnt(%d)" % ([5, 10, 5, 0][k] + nq))
        A("    s_barrier")
        if STAMP: A(stamp())
        if k == 0:
            kvdma(1, 0); kvdma(1, 1)
        if k == QA_AT:
            q32(); nq = 8
    A("    s_waitcnt vmcnt(0)")
    if STAMP: A(stamp())
    A("L_T32:")
    stampn[0] = 6
    q16 = ""
    for ks in range(4):
        q16 += "\n    buffer_load_dwordx4 v[%d:%d], v30, s[12:15], s30 offen offset:%d" % (QF16L[ks], QF16L[ks] + 3, 64 * ks)
    P32 = tile(True, [5, 10, 5, 0], True, post=(kvtxt(1, 0) + kvtxt(1, 1), "", "", q16), postw=((), (), (), R(128, 8)))
    seq32 = finish(P32, NV32, int(os.environ.get('X32', '1')))
    for i in seq32: A("    " + i.text)
    if STAMP: A(stamp())
    A("    s_cmp_eq_u32 s31, 0")
    A("    s_cbranch_scc1 L_fin")
    A(lanedec)
    addr16 = """
    v_xor_b32 v7, v4, v3
    v_lshlrev_b32 v7, 4, v7
    v_lshl_or_b32 v208, v3, 8, v7
    v_xor_b32 v209, 64, v208
    v_xor_b32 v210, 0x80, v208
    v_xor_b32 v211, 0xc0, v208
    ; ---- VA16: 81920 + (4g+r4)*256 + (8c1 | 2 r4 | (g&1))*16 + 8 c0
    v_lshl_add_u32 v7, v4, 2, v5
    v_lshlrev_b32 v7, 8, v7
    v_lshrrev_b32 v212, 1, v6
    v_lshlrev_b32 v212, 3, v212
    v_lshl_add_u32 v212, v5, 1, v212
    v_and_b32 v213, 1, v4
    v_add_u32 v212, v212, v213
    v_lshl_add_u32 v7, v212, 4, v7
    v_and_b32 v212, 1, v6
    v_lshl_add_u32 v7, v212, 3, v7
    v_add_u32 v212, 0x14000, v7
    v_xor_b32 v213, 16, v212
    v_xor_b32 v214, 32, v212
    v_xor_b32 v215, 48, v212
    v_xor_b32 v216, 64, v212
    v_xor_b32 v217, 0x50, v212
    v_xor_b32 v218, 0x60, v212
    v_xor_b32 v219, 0x70, v212
    v_mov_b32 v220, v30
    s_waitcnt vmcnt(8)
"""
    A(addr16)
    P16 = tile(False, None, False)
    seq16 = finish(P16, NV16, int(os.environ.get('X16', '3')))
    for i in seq16: A("    " + i.text)
    A("L_fin:")
    if STAMP:
        A(stamp())
        A("    s_mov_b32 s48, s46")
        A("    s_and_b32 s49, s47, 0xffff")
        A("    s_mov_b32 s50, 0x1000000")
        A("    s_mov_b32 s51, 0x00020000")
        A("    s_lshl_b32 s52, s2, 3")
        A("    s_add_u32 s52, s52, s32")
        A("    s_mul_i32 s52, s52, 64")
        A("    s_mov_b64 exec, 1")
        A("    v_mov_b32 v1, 0")
        for k in range(12):
            A("    v_mov_b32 v2, s%d" % (64 + 2 * k))
            A("    buffer_store_dword v2, v1, s[48:51], s52 offen offset:%d" % (4 * k))
    A("L_end:")
    A("    s_endpgm")
    A('.section .rodata,"a"')
    A(".p2align 6")
    A(".amdhsa_kernel standalone__gqa_softmax__near_ridge_kernel")
    A("  .amdhsa_next_free_vgpr 256")
    A("  .amdhsa_next_free_sgpr 100")
    A("  .amdhsa_accum_offset 256")
    A("  .amdhsa_group_segment_fixed_size 0")
    A("  .amdhsa_kernarg_size 48")
    A("  .amdhsa_user_sgpr_count 2")
    A("  .amdhsa_user_sgpr_kernarg_segment_ptr 1")
    A("  .amdhsa_system_sgpr_workgroup_id_x 1")
    A(".end_amdhsa_kernel")
    open(OUT, "w").write("\n".join(L) + "\n")
    def stat(seq):
        from collections import Counter
        return Counter(i.kind for i in seq)
    print("T16", stat(seq16)); print("T32", stat(seq32))

main()
```

```python
import struct, sys, math

import os
OUT = os.environ.get("OUT", "standalone__gqa_softmax__near_ridge.s")

STF = (" " + os.environ["STF"]) if os.environ.get("STF") else ""
QF = (" " + os.environ["QF"]) if os.environ.get("QF") else ""
KVF = (" " + os.environ["KVF"]) if os.environ.get("KVF") else ""
def f32hex(x):
    return "0x%08x" % struct.unpack("<I", struct.pack("<f", x))[0]

def vr(a, n):
    return "v%d" % a if n == 1 else "v[%d:%d]" % (a, a + n - 1)

class Ins:
    __slots__ = ("text", "kind", "reads", "writes", "srcc", "q", "units", "preds", "pos", "idx", "raw")
    def __init__(self, text, kind, reads=(), writes=(), srcc=(), q="V", units=1):
        self.text = text; self.kind = kind
        self.reads = list(reads); self.writes = list(writes); self.srcc = list(srcc)
        self.q = q; self.units = units; self.preds = []; self.pos = None; self.raw = []

def R(a, n=1):
    return list(range(a, a + n))

MF = ("mfma32", "mfma16")
def mf_lat(kind):
    return 12 if kind == "mfma32" else 8

class Prog:
    def __init__(self):
        self.ins = []
    def add(self, i):
        self.ins.append(i); return i
    def valu(self, text, reads, writes, q="V"):
        return self.add(Ins(text, "valu", reads, writes, q=q))
    def trans(self, text, reads, writes, q="V"):
        return self.add(Ins(text, "trans", reads, writes, q=q, units=2))
    def perm(self, text, regs, q="V"):
        return self.add(Ins(text, "perm", regs, regs, q=q))
    def mfma(self, big, d, a, b, first):
        n = 16 if big else 4
        name = "v_mfma_f32_32x32x16_bf16" if big else "v_mfma_f32_16x16x32_bf16"
        c = "0" if first else vr(d, n)
        reads = R(a, 4) + R(b, 4) + ([] if first else R(d, n))
        return self.add(Ins("%s %s, %s, %s, %s" % (name, vr(d, n), vr(a, 4), vr(b, 4), c),
                            "mfma32" if big else "mfma16", reads, R(d, n),
                            srcc=([] if first else R(d, n)), q="M"))
    def dsr128(self, d, addr, off, tok):
        return self.add(Ins("ds_read_b128 %s, v%d offset:%d" % (vr(d, 4), addr, off), "dsr",
                            [addr, tok], R(d, 4), q="M"))
    def dstr(self, d, addr, off, tok):
        return self.add(Ins("ds_read_b64_tr_b16 %s, v%d offset:%d" % (vr(d, 2), addr, off), "dsr",
                            [addr, tok], R(d, 2), q="M"))
    def sync(self, text, tok):
        return self.add(Ins(text, "sync", [], [tok], q="M"))
    def store4(self, d, addr, off):
        return self.add(Ins("buffer_store_dwordx4 %s, v%d, s[24:27], s30 offen offset:%d%s" % (vr(d, 4), addr, off, STF),
                            "store", R(d, 4) + [addr], [], q="V"))

    def build_dag(self):
        lastw = {}; readers = {}
        for k, i in enumerate(self.ins):
            i.idx = k
            ps = set()
            for r in i.reads:
                if r in lastw:
                    ps.add(lastw[r]); i.raw.append(lastw[r])
            for w in i.writes:
                if w in lastw: ps.add(lastw[w])
                for rd in readers.get(w, ()): ps.add(rd)
            ps.discard(i)
            i.preds = list(ps)
            for r in i.reads:
                readers.setdefault(r, []).append(i)
            for w in i.writes:
                lastw[w] = i; readers[w] = []

    def schedule(self, nv, order=None):
        self.build_dag()
        M = [i for i in self.ins if i.q == "M"]
        V = [i for i in self.ins if i.q == "V"]
        out = []
        def dag_ready(i):
            return all(p.pos is not None for p in i.preds)
        def lat_ready(i):
            for p in i.raw:
                if p.kind in MF and i.kind not in MF:
                    if len(out) - p.pos - 1 < mf_lat(p.kind) + 2: return False
            return True
        def emit(i):
            i.pos = len(out); out.append(i)
        mi = vi = 0
        while mi < len(M) or vi < len(V):
            prog = False
            while mi < len(M) and dag_ready(M[mi]):
                i = M[mi]; mi += 1; emit(i); prog = True
                if i.kind in MF: break
            budget = nv
            while vi < len(V) and budget > 0 and dag_ready(V[vi]):
                m_ok = mi < len(M) and dag_ready(M[mi])
                if m_ok and not lat_ready(V[vi]): break
                i = V[vi]; vi += 1; emit(i); prog = True
                budget -= i.units
            assert prog, "scheduler stuck"
        return out

def insert_waits(seq, extra=0):
    out = []; pend = []
    for i in seq:
        touched = set(i.reads) | set(i.writes)
        need = -1
        for k, regs in enumerate(pend):
            if regs & touched: need = k
        if need >= 0:
            cov = 0; k = need + 1
            while k < len(pend) and cov + len(pend[k]) <= 4 * extra:
                cov += len(pend[k]); k += 1
            need = k - 1
            left = len(pend) - (need + 1)
            out.append(Ins("s_waitcnt lgkmcnt(%d)" % min(left, 15), "wait"))
            pend = pend[need + 1:]
        out.append(i)
        if i.kind == "syncd":
            pend = []
        if i.kind == "dsr":
            pend.append(set(i.writes))
    return out

def insert_nops(seq):
    out = []; pos = 0
    lastw = {}
    lastc = {}
    lastst = {}
    for i in seq:
        need = 0
        def req(p, ws):
            nonlocal need
            d = pos - p - 1
            if ws - d > need: need = ws - d
        ismf = i.kind in MF
        isv = i.kind in ("valu", "trans", "perm")
        for r in i.reads:
            if not isinstance(r, int) or r not in lastw: continue
            p, pi = lastw[r]
            if pi.kind in ("valu", "trans", "perm"):
                if ismf: req(p, 2)
                elif i.kind == "perm": req(p, 2)
                elif pi.kind == "trans" and i.kind == "valu": req(p, 1)
                elif pi.kind == "trans": req(p, 1)
            elif pi.kind in MF:
                if ismf:
                    if r in i.srcc and pi.kind == i.kind and pi.writes == i.srcc:
                        pass
                    elif r in i.srcc:
                        req(p, 10 if pi.kind == "mfma32" else 6)
                    else:
                        req(p, mf_lat(pi.kind))
                else:
                    req(p, mf_lat(pi.kind))
        for w in i.writes:
            if not isinstance(w, int): continue
            if w in lastw:
                p, pi = lastw[w]
                if pi.kind in MF:
                    if ismf:
                        if not (pi.kind == i.kind and pi.writes == i.writes):
                            req(p, 10 if pi.kind == "mfma32" else 6)
                    else:
                        req(p, mf_lat(pi.kind))
            if w in lastc and not ismf:
                p, pi = lastc[w]
                req(p, 7 if pi.kind == "mfma32" else 3)
            if w in lastst:
                req(lastst[w], 2)
        if need > 0:
            while need > 0:
                n = min(need, 16)
                out.append(Ins("s_nop %d" % (n - 1), "nop")); pos += n; need -= n
        out.append(i)
        for w in i.writes:
            if isinstance(w, int): lastw[w] = (pos, i)
        for c in i.srcc: lastc[c] = (pos, i)
        if i.kind == "store":
            for r in i.reads: lastst[r] = pos
        pos += 1
    return out

KA32 = 8; VA32 = 16; OA32 = 20
M0, M1, NEG, ALPHA, LA, LB, T0, T1, RCP = 21, 22, 23, 24, 25, 26, 27, 28, 29
FR = [32, 36, 40, 44, 48, 52]
QF32 = 56; S0 = 88; S1 = 168
O32 = [56, 72, 136, 152]
QF16L = [128, 132, 248, 252]; S0_16 = 56; S1_16 = 136; O16 = 176
KA16 = 208; VA16 = 212; OA16 = 220
FR16 = [32, 36, 40, 44, 48, 52, 224, 228, 232, 236]
OA32B = 31
SC = "s28"; SNC = "s29"

lbl = [0]
import os
STAMP = int(os.environ.get("STAMP", "0"))
stampn = [0]
def stamp():
    if not STAMP: return ""
    k = stampn[0]; stampn[0] += 1
    return "\n    s_memtime s[%d:%d]\n    s_waitcnt lgkmcnt(0)" % (64 + 2 * k, 65 + 2 * k)
def sync_text(vm, cond, post=""):
    body = "s_waitcnt vmcnt(%d)\n    s_barrier%s" % (vm, post)
    if not cond:
        return body + stamp()
    lbl[0] += 1
    return ("s_cmp_eq_u32 s31, 0\n    s_cbranch_scc1 L_skip%d\n    %s\nL_skip%d:" % (lbl[0], body, lbl[0])) + stamp()

def tile(big, syncs=(), twopass=False, vst=()):
    P = Prog()
    if big:
        NKT, NKS, SW = 5, 8, 16
        KA, VA, OA = KA32, VA32, OA32
        QFL, SS = [QF32 + 4 * i for i in range(8)], (S0, S1)
        NDT, NKK, OW = 4, 10, 16
        O = O32; fr = FR
        KT_OFF = 8192; KK_OFF, T_OFF = 4096, 2048
        AHEAD = 4
    else:
        NKT, NKS, SW = 10, 4, 4
        KA, VA, OA = KA16, VA16, OA16
        QFL, SS = QF16L, (S0_16, S1_16)
        NDT, NKK, OW = 8, 5, 4
        O = [O16 + 4 * i for i in range(8)]; fr = FR16
        KT_OFF = 4096; KK_OFF, T_OFF = 8192, 4096
        AHEAD = 8
    NS = NKT * SW
    frc = [0]
    def nextfr():
        f = fr[frc[0] % len(fr)]; frc[0] += 1; return f

    mops = []
    def chk(kind, h, cnt):
        for sy in syncs:
            if sy["at"] == (kind, h, cnt):
                mops.append(("sync", sy))
    def qk(h):
        n = 0
        for kt in range(NKT):
            for ks in range(NKS):
                chk("qk", h, n)
                if h == 1 and n == 0:
                    mops.append(("rebase", KA, NKS))
                mops.append(("qk", h, kt, ks)); n += 1
    def pv(h):
        n = 0
        for kk in range(NKK):
            for dt in range(NDT):
                chk("pv", h, n)
                if h == 1 and n == 0:
                    mops.append(("rebase", VA, NDT))
                mops.append(("pv", h, kk, dt)); n += 1

    if twopass == 2:
        qk(0); mops.append(("v", "max0")); qk(1); mops.append(("v", "max1")); mops.append(("v", "sm0"))
        mops.append(("v", "sm1")); pv(0); pv(1); mops.append(("v", "epi"))
    elif twopass:
        qk(0); mops.append(("v", "max0")); qk(1); mops.append(("v", "max1")); mops.append(("v", "sm0"))
        pv(0); mops.append(("v", "sm1")); pv(1); mops.append(("v", "epi"))
    else:
        qk(0); mops.append(("v", "max0")); qk(1); mops.append(("v", "sm0")); mops.append(("v", "max1"))
        pv(0); mops.append(("v", "sm1")); mops.append(("v", "resc")); pv(1); mops.append(("v", "epi"))

    mm_idx = [k for k, o in enumerate(mops) if o[0] in ("qk", "pv")]
    fragof = {}
    issued = set()
    def issue_read(k):
        o = mops[k]
        f = nextfr(); fragof[k] = f
        if o[0] == "qk":
            _, h, kt, ks = o
            P.dsr128(f, KA + ks, kt * KT_OFF, "K%d" % h)
        else:
            _, h, kk, dt = o
            P.dstr(f, VA + dt, kk * KK_OFF, "V%d" % h)
            P.dstr(f + 2, VA + dt, kk * KK_OFF + T_OFF, "V%d" % h)
        issued.add(k)
    done_ctl = set()
    def do_ctl(k):
        o = mops[k]
        if k in done_ctl: return
        done_ctl.add(k)
        if o[0] == "sync":
            sy = o[1]
            si = P.sync(sy["text"] + stamp(), sy.get("tok", "none"))
            si.writes = si.writes + list(sy.get("writes", ()))
            si.reads = si.reads + list(sy.get("reads", ()))
        elif o[0] == "rebase":
            for j in range(o[2]):
                P.valu("v_add_u32 v%d, 0xa000, v%d" % (o[1] + j, o[1] + j), [o[1] + j], [o[1] + j], q="M")

    def reduce_x(x, op):
        perms = ["v_permlane32_swap_b32"] if big else ["v_permlane16_swap_b32", "v_permlane32_swap_b32"]
        for pm in perms:
            P.valu("v_mov_b32 v%d, v%d" % (T0, x), [x], [T0])
            P.perm("%s v%d, v%d" % (pm, x, T0), [x, T0])
            P.valu("%s v%d, v%d, v%d" % (op, x, x, T0), [x, T0], [x])

    def vwork(name):
        if name in ("max0", "max1"):
            h = int(name[3]); s = SS[h]; m = M0 if h == 0 else M1
            if h == 0:
                P.valu("v_max_f32 v%d, v%d, v%d" % (m, s, s + 1), [s, s + 1], [m]); st = 2
            else:
                P.valu("v_max3_f32 v%d, v%d, v%d, v%d" % (m, M0, s, s + 1), [M0, s, s + 1], [m]); st = 2
            for j in range(st, NS, 2):
                P.valu("v_max3_f32 v%d, v%d, v%d, v%d" % (m, m, s + j, s + j + 1), [m, s + j, s + j + 1], [m])
            if not (twopass and h == 0):
                reduce_x(m, "v_max_f32")
        elif name in ("sm0", "sm1"):
            h = int(name[2]); s = SS[h]; m = M0 if h == 0 else M1
            if twopass: m = M1
            if not (twopass and h == 1):
                P.valu("v_mul_f32 v%d, %s, v%d" % (NEG, SNC, m), [m], [NEG])
            if h == 1 and not twopass:
                P.valu("v_fma_f32 v%d, v%d, %s, v%d" % (ALPHA, M0, SC, NEG), [M0, NEG], [ALPHA])
                P.trans("v_exp_f32 v%d, v%d" % (ALPHA, ALPHA), [ALPHA], [ALPHA])
                P.valu("v_add_f32 v%d, v%d, v%d" % (LA, LA, LB), [LA, LB], [LA])
                P.valu("v_mul_f32 v%d, v%d, v%d" % (LA, LA, ALPHA), [LA, ALPHA], [LA])
            for g in range(NS // 8):
                b = s + 8 * g
                for j in range(8):
                    P.valu("v_fma_f32 v%d, v%d, %s, v%d" % (b + j, b + j, SC, NEG), [b + j, NEG], [b + j])
                for j in range(8):
                    P.trans("v_exp_f32 v%d, v%d" % (b + j, b + j), [b + j], [b + j])
                for j in range(8):
                    acc = LA if (j & 1) == 0 else LB
                    first = (h == 0 and g == 0 and j < 2) or (h == 1 and g == 0 and j == 1 and not twopass)
                    if first:
                        P.valu("v_mov_b32 v%d, v%d" % (acc, b + j), [b + j], [acc])
                    else:
                        P.valu("v_add_f32 v%d, v%d, v%d" % (acc, acc, b + j), [acc, b + j], [acc])
                for j in range(4):
                    d = s + 4 * g + j
                    P.valu("v_cvt_pk_bf16_f32 v%d, v%d, v%d" % (d, b + 2 * j, b + 2 * j + 1),
                           [b + 2 * j, b + 2 * j + 1], [d])
        elif name == "resc":
            for o in O:
                for j in range(OW):
                    P.valu("v_mul_f32 v%d, v%d, v%d" % (o + j, o + j, ALPHA), [o + j, ALPHA], [o + j])
        elif name == "epi":
            P.valu("v_add_f32 v%d, v%d, v%d" % (LA, LA, LB), [LA, LB], [LA])
            reduce_x(LA, "v_add_f32")
            P.trans("v_rcp_f32 v%d, v%d" % (RCP, LA), [LA], [RCP])
            def cv(o, n):
                for j in range(2 * n):
                    P.valu("v_mul_f32 v%d, v%d, v%d" % (o + j, o + j, RCP), [o + j, RCP], [o + j])
                for j in range(n):
                    P.valu("v_cvt_pk_bf16_f32 v%d, v%d, v%d" % (o + j, o + 2 * j, o + 2 * j + 1),
                           [o + 2 * j, o + 2 * j + 1], [o + j])
            if big:
                for e in range(2):
                    oa, ob = O[2 * e], O[2 * e + 1]
                    cv(oa, 8); cv(ob, 8)
                    for o in (oa, ob):
                        for j in range(4):
                            P.perm("v_permlane32_swap_b32 v%d, v%d" % (o + j, o + 4 + j), [o + j, o + 4 + j])
                    for j in range(8):
                        P.perm("v_permlane16_swap_b32 v%d, v%d" % (oa + j, ob + j), [oa + j, ob + j])
                    P.store4(oa, OA, 64 * e); P.store4(ob, OA32B, 64 * e)
                    P.store4(oa + 4, OA, 128 + 64 * e); P.store4(ob + 4, OA32B, 128 + 64 * e)
            else:
                for e in range(2):
                    ws = []
                    for u in (2 * e, 2 * e + 1):
                        o = O[2 * u]
                        cv(o, 4)
                        P.perm("v_permlane16_swap_b32 v%d, v%d" % (o, o + 2), [o, o + 2])
                        P.perm("v_permlane16_swap_b32 v%d, v%d" % (o + 1, o + 3), [o + 1, o + 3])
                        ws.append(o)
                    for j in range(4):
                        P.perm("v_permlane32_swap_b32 v%d, v%d" % (ws[0] + j, ws[1] + j), [ws[0] + j, ws[1] + j])
                    P.store4(ws[0], OA, 64 * e); P.store4(ws[1], OA, 128 + 64 * e)

    nread = 0
    for pos_k, o in enumerate(mops):
        if o[0] == "v":
            vwork(o[1])
            if STAMP and vst and o[1] in vst:
                P.add(Ins("s_nop 0" + stamp(), "syncd", [], [], q="V"))
            continue
        if o[0] in ("sync", "rebase"):
            do_ctl(pos_k); continue
        j = mm_idx.index(pos_k)
        while nread < len(mm_idx) and nread <= j + AHEAD:
            k = mm_idx[nread]
            if any(mops[c][0] == "sync" and mops[c][1].get("fence") and c not in done_ctl for c in range(pos_k, k)):
                break
            for c in range(pos_k, k):
                if mops[c][0] in ("sync", "rebase"): do_ctl(c)
            issue_read(k); nread += 1
        f = fragof[pos_k]
        if o[0] == "qk":
            _, h, kt, ks = o
            P.mfma(big, SS[h] + SW * kt, f, QFL[ks], ks == 0)
        else:
            _, h, kk, dt = o
            P.mfma(big, O[dt], f, SS[h] + 4 * kk, h == 0 and kk == 0)
    return P

def finish(P, nv, extra=0):
    seq = P.schedule(nv)
    seq = insert_waits(seq, extra)
    seq = insert_nops(seq)
    return seq

def main():
    NV32 = int(os.environ.get("NV32", "8"))
    NV16 = int(os.environ.get("NV16", "4"))
    QA_AT = int(os.environ.get("QA_AT", "2"))
    c = math.log2(math.e) / math.sqrt(128.0)
    L = []
    A = L.append
    hdr = open("standalone__gqa_softmax__near_ridge.s.ref").read().split("\n")
    for line in hdr:
        if line.startswith("; @launch"):
            A("; @launch grid=(256,1,1) block=(512,1,1) lds=163840")
        elif line.startswith(";"):
            A(line)
        else:
            break
    A('.amdgcn_target "amdgcn-amd-amdhsa--gfx950"')
    A(".text")
    A(".globl standalone__gqa_softmax__near_ridge_kernel")
    A(".p2align 8")
    A(".type standalone__gqa_softmax__near_ridge_kernel,@function")
    A("standalone__gqa_softmax__near_ridge_kernel:")
    lanedec = """
    v_and_b32 v1, 31, v0                   ; r32
    v_lshrrev_b32 v2, 5, v0                ; h
    v_and_b32 v3, 15, v0                   ; r16
    v_lshrrev_b32 v4, 4, v0                ; g (0..3)
    v_lshrrev_b32 v5, 2, v0
    v_and_b32 v5, 3, v5                    ; r4
    v_and_b32 v6, 3, v0                    ; c
"""
    pro = """
    s_cmp_ge_u32 s2, 256
    s_cbranch_scc1 L_end
    s_load_dwordx4 s[4:7], s[0:1], 0
    s_load_dwordx4 s[8:11], s[0:1], 16
    s_load_dwordx2 s[46:47], s[0:1], 40
    v_lshrrev_b32 v1, 6, v0
    v_and_b32 v0, 63, v0
    s_nop 0
    v_readfirstlane_b32 s32, v1            ; wave id
    ; workgroup -> (group, head)
    s_and_b32 s33, s2, 7
    s_lshr_b32 s34, s2, 3
    s_lshl_b32 s33, s33, 3
    s_lshr_b32 s35, s34, 2
    s_add_u32 s33, s33, s35                ; kv group
    s_and_b32 s34, s34, 3
    s_lshl_b32 s35, s33, 2
    s_add_u32 s35, s35, s34                ; q head
    s_mul_i32 s30, s35, 81920              ; q/out head byte offset
    s_mul_i32 s36, s33, 81920              ; kv byte offset
    s_mov_b32 s28, %s
    s_mov_b32 s29, %s
    s_and_b32 s37, s32, 3                  ; simd slot
    s_mul_i32 s38, s37, 80                 ; row base
    s_lshr_b32 s31, s32, 2                 ; 1 for B waves (w>=4): T32 with barriers, then T16
    ; T32 row0: B -> 80s ; A -> 80s+32
    s_lshl_b32 s39, s31, 5
    s_sub_u32 s39, 32, s39
    s_add_u32 s39, s39, s38                ; T32 row0
    s_add_u32 s40, s38, 64                 ; T16 row0
""" % (f32hex(c), f32hex(-c)) + lanedec + """
    ; ---- DMA voffsets:  KD=v23  VD=v24
    s_lshl_b32 s41, s37, 2
    v_add_u32 v7, s41, v4                  ; 4(w&3)+(i>>4)
    v_xor_b32 v7, v7, v3
    v_lshlrev_b32 v7, 4, v7
    v_lshl_or_b32 v23, v4, 8, v7
    s_and_b32 s41, s32, 1
    v_lshlrev_b32 v7, 1, v4
    v_or_b32 v7, s41, v7
    v_xor_b32 v7, v7, v3
    v_lshlrev_b32 v7, 4, v7
    v_lshl_or_b32 v24, v4, 8, v7
    ; Q32 voffset (v21) = (row0+r)*256 + 16h
    v_add_u32 v7, s39, v1
    v_lshlrev_b32 v7, 8, v7
    v_lshl_add_u32 v21, v2, 4, v7
    ; Q16 voffset (v30) = (row0+r16)*256 + 16 g   (also OA16)
    v_add_u32 v7, s40, v3
    v_lshlrev_b32 v7, 8, v7
    v_lshl_add_u32 v30, v4, 4, v7
    s_waitcnt lgkmcnt(0)
    s_mov_b32 s12, s4
    s_and_b32 s13, s5, 0xffff
    s_mov_b32 s14, 20971520
    s_mov_b32 s15, 0x00020000
    s_mov_b32 s16, s6
    s_and_b32 s17, s7, 0xffff
    s_mov_b32 s18, 5242880
    s_mov_b32 s19, 0x00020000
    s_mov_b32 s20, s8
    s_and_b32 s21, s9, 0xffff
    s_mov_b32 s22, 5242880
    s_mov_b32 s23, 0x00020000
    s_mov_b32 s24, s10
    s_and_b32 s25, s11, 0xffff
    s_mov_b32 s26, 20971520
    s_mov_b32 s27, 0x00020000
    s_lshl_b32 s42, s32, 10                ; lds offset = 1024 w
    s_add_u32 s43, s36, s42                ; global offset
"""
    A(pro)
    if STAMP:
        A("".join("    s_mov_b64 s[%d:%d], 0\n" % (64 + 2 * k, 65 + 2 * k) for k in range(12)) + "    s_memrealtime s[88:89]\n" + stamp())
    def q32():
        for ks in range(8):
            A("    buffer_load_dwordx4 v[%d:%d], v21, s[12:15], s30 offen offset:%d%s" % (QF32 + 4 * ks, QF32 + 4 * ks + 3, 32 * ks, QF))
    def kvtxt(which, half):
        t = ""
        for n in range(5 * half, 5 * half + 5):
            t += "\n    s_add_u32 s44, s42, %d" % ((81920 if which else 0) + 8192 * n)
            t += "\n    s_mov_b32 m0, s44"
            t += "\n    s_add_u32 s45, s43, %d" % (8192 * n)
            t += "\n    buffer_load_dwordx4 v%d, s[%d:%d], s45 offen%s lds" % (24 if which else 23, 20 if which else 16, 23 if which else 19, KVF)
        return t
    def kvdma(which, half):
        A(kvtxt(which, half)[1:])
    def vdma(half):
        for n in range(10 * half, 10 * half + 10):
            A("    s_add_u32 s44, s42, %d" % (81920 + 4096 * n))
            A("    s_mov_b32 m0, s44")
            A("    s_add_u32 s45, s43, %d" % (4096 * n))
            A("    buffer_load_dwordx4 v24, s[20:23], s45 offen%s lds" % KVF)
    kvdma(0, 0); kvdma(0, 1)
    A("    s_cmp_eq_u32 s31, 0")
    A("    s_cbranch_scc1 L_noq")
    q32()
    A("L_noq:")
    addr32 = """
    ; ---- KA32
    v_xor_b32 v7, v2, v3
    v_lshlrev_b32 v7, 4, v7
    v_lshl_or_b32 v8, v1, 8, v7
    v_xor_b32 v9, 32, v8
    v_xor_b32 v10, 64, v8
    v_xor_b32 v11, 0x60, v8
    v_xor_b32 v12, 0x80, v8
    v_xor_b32 v13, 0xa0, v8
    v_xor_b32 v14, 0xc0, v8
    v_xor_b32 v15, 0xe0, v8
    ; ---- VA32: 81920 + (4h+r4)*256 + (8(c&1) + 2 r4 + (g'^h))*16 + 8(c>>1)
    v_lshl_add_u32 v7, v2, 2, v5           ; 4h+r4
    v_lshlrev_b32 v7, 8, v7
    v_and_b32 v16, 1, v6
    v_lshlrev_b32 v16, 3, v16
    v_lshl_add_u32 v16, v5, 1, v16
    v_and_b32 v17, 1, v4
    v_xor_b32 v17, v17, v2
    v_add_u32 v16, v16, v17
    v_lshl_add_u32 v7, v16, 4, v7
    v_lshrrev_b32 v16, 1, v6
    v_lshl_add_u32 v7, v16, 3, v7
    v_add_u32 v16, 0x14000, v7
    v_xor_b32 v17, 32, v16
    v_xor_b32 v18, 64, v16
    v_xor_b32 v19, 0x60, v16
    v_add_u32 v7, s39, v3
    v_lshlrev_b32 v7, 8, v7
    v_and_b32 v20, 1, v4
    v_lshl_add_u32 v20, v20, 1, v2
    v_lshl_add_u32 v20, v20, 4, v7
    v_add_u32 v31, 0x1000, v20
"""
    A(addr32)
    A("    s_barrier")
    A("    s_cmp_eq_u32 s31, 1")
    A("    s_cbranch_scc1 L_B")
    q32()
    A("    s_waitcnt vmcnt(8)")
    A("    s_barrier")
    if STAMP: A(stamp())
    vdma(0); vdma(1)
    A("    s_waitcnt vmcnt(20)")
    if STAMP: A(stamp())
    def pos(e, d):
        v = os.environ.get(e, d).split(",")
        return (v[0], int(v[1]), int(v[2]))
    syA = [dict(at=pos("A2", "qk,1,10"), text="s_waitcnt vmcnt(10)\n    s_barrier"),
           dict(at=pos("A3", "pv,0,0"), text="s_waitcnt vmcnt(0)\n    s_barrier", tok="V0"),
           ]
    PA = tile(True, syA, twopass=int(os.environ.get("TPA", "1")), vst=os.environ.get("VSTA", "").split(","))
    seqA = finish(PA, NV32, int(os.environ.get('X32', '1')))
    for i in seqA: A("    " + i.text)
    if STAMP: A(stamp())
    A("    s_branch L_fin")
    A("L_B:")
    if int(os.environ.get("PRIO", "0")): A("    s_setprio %d" % int(os.environ.get("PRIO", "0")))
    stampn[0] = 1
    A("    s_waitcnt vmcnt(8)")
    A("    s_barrier")
    if STAMP: A(stamp())
    A("    s_waitcnt vmcnt(0)")
    if STAMP: A(stamp())
    q16 = ""
    for ks in range(4):
        q16 += "buffer_load_dwordx4 v[%d:%d], v30, s[12:15], s30 offen offset:%d%s\n    " % (QF16L[ks], QF16L[ks] + 3, 64 * ks, QF)
    syB = [dict(at=("pv", 0, 0), text=q16 + "s_barrier", tok="V0", writes=R(128, 8), reads=R(S0, 40) + R(S1, 40), fence=True),
           dict(at=("pv", 1, 0), text="s_barrier", tok="V1")]
    P32 = tile(True, syB, twopass=2, vst=os.environ.get("VSTB", "").split(","))
    seq32 = finish(P32, NV32, int(os.environ.get('X32', '1')))
    for i in seq32: A("    " + i.text)
    if STAMP: A(stamp())
    REP16 = int(os.environ.get("REP16", "0"))
    if REP16:
        A("    s_mov_b32 s53, 0")
        A("L_rep16:")
    A(lanedec)
    addr16 = """
    v_xor_b32 v7, v4, v3
    v_lshlrev_b32 v7, 4, v7
    v_lshl_or_b32 v208, v3, 8, v7
    v_xor_b32 v209, 64, v208
    v_xor_b32 v210, 0x80, v208
    v_xor_b32 v211, 0xc0, v208
    ; ---- VA16: 81920 + (4g+r4)*256 + (8c1 | 2 r4 | (g&1))*16 + 8 c0
    v_lshl_add_u32 v7, v4, 2, v5
    v_lshlrev_b32 v7, 8, v7
    v_lshrrev_b32 v212, 1, v6
    v_lshlrev_b32 v212, 3, v212
    v_lshl_add_u32 v212, v5, 1, v212
    v_and_b32 v213, 1, v4
    v_add_u32 v212, v212, v213
    v_lshl_add_u32 v7, v212, 4, v7
    v_and_b32 v212, 1, v6
    v_lshl_add_u32 v7, v212, 3, v7
    v_add_u32 v212, 0x14000, v7
    v_xor_b32 v213, 16, v212
    v_xor_b32 v214, 32, v212
    v_xor_b32 v215, 48, v212
    v_xor_b32 v216, 64, v212
    v_xor_b32 v217, 0x50, v212
    v_xor_b32 v218, 0x60, v212
    v_xor_b32 v219, 0x70, v212
    v_mov_b32 v220, v30
    s_waitcnt vmcnt(8)
"""
    A(addr16)
    if STAMP: A(stamp())
    P16 = tile(False, (), int(os.environ.get("TP16", "0")))
    seq16 = finish(P16, NV16, int(os.environ.get('X16', '3')))
    for i in seq16: A("    " + i.text)
    if REP16:
        A("    s_cmp_eq_u32 s53, 1")
        A("    s_cbranch_scc1 L_fin")
        A(stamp())
        A("    s_mov_b32 s53, 1")
        A("    s_mov_b64 s[80:81], s[76:77]")
        A("    s_branch L_rep16")
    A("L_fin:")
    if STAMP:
        stampn[0] = 11
        A(stamp())
        A("    s_waitcnt vmcnt(0)")
        A("    s_memrealtime s[90:91]")
        A("    s_memtime s[92:93]")
        A("    s_waitcnt lgkmcnt(0)")
        A("    s_mov_b32 s48, s46")
        A("    s_and_b32 s49, s47, 0xffff")
        A("    s_mov_b32 s50, 0x1000000")
        A("    s_mov_b32 s51, 0x00020000")
        A("    s_lshl_b32 s52, s2, 3")
        A("    s_add_u32 s52, s52, s32")
        A("    s_mul_i32 s52, s52, 64")
        A("    s_mov_b64 exec, 1")
        A("    v_mov_b32 v1, 0")
        for k in range(15):
            A("    v_mov_b32 v2, s%d" % (64 + 2 * k))
            A("    buffer_store_dword v2, v1, s[48:51], s52 offen offset:%d" % (4 * k))
    A("L_end:")
    A("    s_endpgm")
    A('.section .rodata,"a"')
    A(".p2align 6")
    A(".amdhsa_kernel standalone__gqa_softmax__near_ridge_kernel")
    A("  .amdhsa_next_free_vgpr 256")
    A("  .amdhsa_next_free_sgpr 100")
    A("  .amdhsa_accum_offset 256")
    A("  .amdhsa_group_segment_fixed_size 0")
    A("  .amdhsa_kernarg_size 48")
    A("  .amdhsa_user_sgpr_count 2")
    A("  .amdhsa_user_sgpr_kernarg_segment_ptr 1")
    A("  .amdhsa_system_sgpr_workgroup_id_x 1")
    A(".end_amdhsa_kernel")
    open(OUT, "w").write("\n".join(L) + "\n")
    def stat(seq):
        from collections import Counter
        return Counter(i.kind for i in seq)
    print("T16", stat(seq16)); print("T32", stat(seq32))

main()
```

```python
import struct, sys, math

import os
OUT = os.environ.get("OUT", "standalone__gqa_softmax__near_ridge.s")

def _fl(e, d):
    v = os.environ.get(e, d)
    return (" " + v) if v and v != "none" else ""
STF = _fl("STF", "sc1"); QF = _fl("QF", "nt"); KVF = _fl("KVF", "nt")
def f32hex(x):
    return "0x%08x" % struct.unpack("<I", struct.pack("<f", x))[0]

def vr(a, n):
    return "v%d" % a if n == 1 else "v[%d:%d]" % (a, a + n - 1)

class Ins:
    __slots__ = ("text", "kind", "reads", "writes", "srcc", "q", "units", "preds", "pos", "idx", "raw")
    def __init__(self, text, kind, reads=(), writes=(), srcc=(), q="V", units=1):
        self.text = text; self.kind = kind
        self.reads = list(reads); self.writes = list(writes); self.srcc = list(srcc)
        self.q = q; self.units = units; self.preds = []; self.pos = None; self.raw = []

def R(a, n=1):
    return list(range(a, a + n))

MF = ("mfma32", "mfma16")
def mf_lat(kind):
    return 12 if kind == "mfma32" else 8

class Prog:
    def __init__(self):
        self.ins = []
    def add(self, i):
        self.ins.append(i); return i
    def valu(self, text, reads, writes, q="V"):
        return self.add(Ins(text, "valu", reads, writes, q=q))
    def trans(self, text, reads, writes, q="V"):
        return self.add(Ins(text, "trans", reads, writes, q=q, units=2))
    def perm(self, text, regs, q="V"):
        return self.add(Ins(text, "perm", regs, regs, q=q))
    def mfma(self, big, d, a, b, first):
        n = 16 if big else 4
        name = "v_mfma_f32_32x32x16_bf16" if big else "v_mfma_f32_16x16x32_bf16"
        c = "0" if first else vr(d, n)
        reads = R(a, 4) + R(b, 4) + ([] if first else R(d, n))
        return self.add(Ins("%s %s, %s, %s, %s" % (name, vr(d, n), vr(a, 4), vr(b, 4), c),
                            "mfma32" if big else "mfma16", reads, R(d, n),
                            srcc=([] if first else R(d, n)), q="M"))
    def dsr128(self, d, addr, off, tok):
        return self.add(Ins("ds_read_b128 %s, v%d offset:%d" % (vr(d, 4), addr, off), "dsr",
                            [addr, tok], R(d, 4), q="M"))
    def dstr(self, d, addr, off, tok):
        return self.add(Ins("ds_read_b64_tr_b16 %s, v%d offset:%d" % (vr(d, 2), addr, off), "dsr",
                            [addr, tok], R(d, 2), q="M"))
    def sync(self, text, tok):
        return self.add(Ins(text, "sync", [], [tok], q="M"))
    def store4(self, d, addr, off):
        return self.add(Ins("buffer_store_dwordx4 %s, v%d, s[24:27], s30 offen offset:%d%s" % (vr(d, 4), addr, off, STF),
                            "store", R(d, 4) + [addr], [], q="V"))

    def build_dag(self):
        lastw = {}; readers = {}
        for k, i in enumerate(self.ins):
            i.idx = k
            ps = set()
            for r in i.reads:
                if r in lastw:
                    ps.add(lastw[r]); i.raw.append(lastw[r])
            for w in i.writes:
                if w in lastw: ps.add(lastw[w])
                for rd in readers.get(w, ()): ps.add(rd)
            ps.discard(i)
            i.preds = list(ps)
            for r in i.reads:
                readers.setdefault(r, []).append(i)
            for w in i.writes:
                lastw[w] = i; readers[w] = []

    def schedule(self, nv, order=None):
        self.build_dag()
        M = [i for i in self.ins if i.q == "M"]
        V = [i for i in self.ins if i.q == "V"]
        out = []
        def dag_ready(i):
            return all(p.pos is not None for p in i.preds)
        def lat_ready(i):
            for p in i.raw:
                if p.kind in MF and i.kind not in MF:
                    if len(out) - p.pos - 1 < mf_lat(p.kind) + 2: return False
            return True
        def emit(i):
            i.pos = len(out); out.append(i)
        mi = vi = 0
        while mi < len(M) or vi < len(V):
            prog = False
            while mi < len(M) and dag_ready(M[mi]):
                i = M[mi]; mi += 1; emit(i); prog = True
                if i.kind in MF: break
            budget = nv
            while vi < len(V) and budget > 0 and dag_ready(V[vi]):
                m_ok = mi < len(M) and dag_ready(M[mi])
                if m_ok and not lat_ready(V[vi]): break
                i = V[vi]; vi += 1; emit(i); prog = True
                budget -= i.units
            assert prog, "scheduler stuck"
        return out

def insert_waits(seq, extra=0):
    out = []; pend = []
    for i in seq:
        touched = set(i.reads) | set(i.writes)
        need = -1
        for k, regs in enumerate(pend):
            if regs & touched: need = k
        if need >= 0:
            cov = 0; k = need + 1
            while k < len(pend) and cov + len(pend[k]) <= 4 * extra:
                cov += len(pend[k]); k += 1
            need = k - 1
            left = len(pend) - (need + 1)
            out.append(Ins("s_waitcnt lgkmcnt(%d)" % min(left, 15), "wait"))
            pend = pend[need + 1:]
        out.append(i)
        if i.kind == "syncd":
            pend = []
        if i.kind == "dsr":
            pend.append(set(i.writes))
    return out

def insert_nops(seq):
    out = []; pos = 0
    lastw = {}
    lastc = {}
    lastst = {}
    for i in seq:
        need = 0
        def req(p, ws):
            nonlocal need
            d = pos - p - 1
            if ws - d > need: need = ws - d
        ismf = i.kind in MF
        isv = i.kind in ("valu", "trans", "perm")
        for r in i.reads:
            if not isinstance(r, int) or r not in lastw: continue
            p, pi = lastw[r]
            if pi.kind in ("valu", "trans", "perm"):
                if ismf: req(p, 2)
                elif i.kind == "perm": req(p, 2)
                elif pi.kind == "trans" and i.kind == "valu": req(p, 1)
                elif pi.kind == "trans": req(p, 1)
            elif pi.kind in MF:
                if ismf:
                    if r in i.srcc and pi.kind == i.kind and pi.writes == i.srcc:
                        pass
                    elif r in i.srcc:
                        req(p, 10 if pi.kind == "mfma32" else 6)
                    else:
                        req(p, mf_lat(pi.kind))
                else:
                    req(p, mf_lat(pi.kind))
        for w in i.writes:
            if not isinstance(w, int): continue
            if w in lastw:
                p, pi = lastw[w]
                if pi.kind in MF:
                    if ismf:
                        if not (pi.kind == i.kind and pi.writes == i.writes):
                            req(p, 10 if pi.kind == "mfma32" else 6)
                    else:
                        req(p, mf_lat(pi.kind))
            if w in lastc and not ismf:
                p, pi = lastc[w]
                req(p, 7 if pi.kind == "mfma32" else 3)
            if w in lastst:
                req(lastst[w], 2)
        if need > 0:
            while need > 0:
                n = min(need, 16)
                out.append(Ins("s_nop %d" % (n - 1), "nop")); pos += n; need -= n
        out.append(i)
        for w in i.writes:
            if isinstance(w, int): lastw[w] = (pos, i)
        for c in i.srcc: lastc[c] = (pos, i)
        if i.kind == "store":
            for r in i.reads: lastst[r] = pos
        pos += 1
    return out

KA32 = 8; VA32 = 16; OA32 = 20
M0, M1, NEG, ALPHA, LA, LB, T0, RCP = 22, 23, 24, 25, 26, 27, 3, 25
VD = 1; Q16A = 2; SEL = 26
ONES = int(os.environ.get("ONES", "1"))
FR = [32, 36, 40, 44, 48, 52]
QF32 = 56; S0 = 88; S1 = 168
O32 = [56, 72, 136, 152]
QF16L = [248, 252, 4, 28]; S0_16 = 56; S1_16 = 136; O16 = 176
KA16 = 208; VA16 = 212; OA16 = 220
FR16 = [32, 36, 40, 44, 48, 52, 224, 228, 232, 236]
OA32B = 21
SC = "s28"; SNC = "s29"

lbl = [0]
import os
STAMP = int(os.environ.get("STAMP", "0"))
stampn = [0]
def stamp():
    if not STAMP: return ""
    k = stampn[0]; stampn[0] += 1
    return "\n    s_memtime s[%d:%d]\n    s_waitcnt lgkmcnt(0)" % (64 + 2 * k, 65 + 2 * k)
def sync_text(vm, cond, post=""):
    body = "s_waitcnt vmcnt(%d)\n    s_barrier%s" % (vm, post)
    if not cond:
        return body + stamp()
    lbl[0] += 1
    return ("s_cmp_eq_u32 s31, 0\n    s_cbranch_scc1 L_skip%d\n    %s\nL_skip%d:" % (lbl[0], body, lbl[0])) + stamp()

def tile(big, syncs=(), twopass=False, vst=(), prio=None):
    P = Prog()
    if big:
        NKT, NKS, SW = 5, 8, 16
        KA, VA, OA = KA32, VA32, OA32
        QFL, SS = [QF32 + 4 * i for i in range(8)], (S0, S1)
        NDT, NKK, OW = 4, 10, 16
        O = O32; fr = FR
        KT_OFF = 8192; KK_OFF, T_OFF = 4096, 2048
        AHEAD = 4
        SELT, LS = 8, 12
    else:
        NKT, NKS, SW = 10, 4, 4
        KA, VA, OA = KA16, VA16, OA16
        QFL, SS = QF16L, (S0_16, S1_16)
        NDT, NKK, OW = 8, 5, 4
        O = [O16 + 4 * i for i in range(8)]; fr = FR16
        KT_OFF = 4096; KK_OFF, T_OFF = 8192, 4096
        AHEAD = 8
        SELT, LS = 208, 240
    NS = NKT * SW
    frc = [0]
    def nextfr():
        f = fr[frc[0] % len(fr)]; frc[0] += 1; return f

    mops = []
    def chk(kind, h, cnt):
        for sy in syncs:
            if sy["at"] == (kind, h, cnt):
                mops.append(("sync", sy))
    def qk(h):
        n = 0
        for kt in range(NKT):
            for ks in range(NKS):
                chk("qk", h, n)
                if h == 1 and n == 0:
                    mops.append(("rebase", KA, NKS))
                mops.append(("qk", h, kt, ks)); n += 1
    def pv(h):
        n = 0
        for kk in range(NKK):
            for dt in range(NDT):
                chk("pv", h, n)
                if h == 1 and n == 0:
                    mops.append(("rebase", VA, NDT))
                mops.append(("pv", h, kk, dt)); n += 1
                if ONES and dt == 0:
                    mops.append(("ls", h, kk))

    if twopass == 3:
        twopass = 0
        qk(0); mops.append(("v", "max0")); qk(1); mops.append(("v", "sm0")); mops.append(("v", "max1"))
        mops.append(("v", "sm1")); pv(0); mops.append(("v", "resc")); pv(1); mops.append(("v", "epi"))
    elif twopass == 2:
        qk(0); mops.append(("v", "max0")); qk(1); mops.append(("v", "max1")); mops.append(("v", "sm0"))
        mops.append(("v", "sm1"))
        pv(0); pv(1); mops.append(("v", "epi"))
    elif twopass:
        qk(0); mops.append(("v", "max0")); qk(1); mops.append(("v", "max1")); mops.append(("v", "sm0"))
        pv(0); mops.append(("v", "sm1")); pv(1); mops.append(("v", "epi"))
    else:
        qk(0); mops.append(("v", "max0")); qk(1); mops.append(("v", "sm0")); mops.append(("v", "max1"))
        pv(0); mops.append(("v", "sm1")); mops.append(("v", "resc")); pv(1); mops.append(("v", "epi"))

    mm_idx = [k for k, o in enumerate(mops) if o[0] in ("qk", "pv")]
    fragof = {}
    issued = set()
    def issue_read(k):
        o = mops[k]
        f = nextfr(); fragof[k] = f
        if o[0] == "qk":
            _, h, kt, ks = o
            P.dsr128(f, KA + ks, kt * KT_OFF, "K%d" % h)
        else:
            _, h, kk, dt = o
            P.dstr(f, VA + dt, kk * KK_OFF, "V%d" % h)
            P.dstr(f + 2, VA + dt, kk * KK_OFF + T_OFF, "V%d" % h)
        issued.add(k)
    done_ctl = set()
    def do_ctl(k):
        o = mops[k]
        if k in done_ctl: return
        done_ctl.add(k)
        if o[0] == "sync":
            sy = o[1]
            si = P.sync(sy["text"] + ("" if sy.get("nostamp") else stamp()), sy.get("tok", "none"))
            si.writes = si.writes + list(sy.get("writes", ()))
            si.reads = si.reads + list(sy.get("reads", ()))
            if sy.get("kind"): si.kind = sy["kind"]
        elif o[0] == "rebase":
            for j in range(o[2]):
                P.valu("v_add_u32 v%d, 0xa000, v%d" % (o[1] + j, o[1] + j), [o[1] + j], [o[1] + j], q="M")

    def reduce_x(x, op):
        perms = ["v_permlane32_swap_b32"] if big else ["v_permlane16_swap_b32", "v_permlane32_swap_b32"]
        for pm in perms:
            P.valu("v_mov_b32 v%d, v%d" % (T0, x), [x], [T0])
            P.perm("%s v%d, v%d" % (pm, x, T0), [x, T0])
            P.valu("%s v%d, v%d, v%d" % (op, x, x, T0), [x, T0], [x])

    def vwork(name):
        if name in ("max0", "max1"):
            h = int(name[3]); s = SS[h]; m = M0 if h == 0 else M1
            if h == 0:
                P.valu("v_max_f32 v%d, v%d, v%d" % (m, s, s + 1), [s, s + 1], [m]); st = 2
            else:
                P.valu("v_max3_f32 v%d, v%d, v%d, v%d" % (m, M0, s, s + 1), [M0, s, s + 1], [m]); st = 2
            for j in range(st, NS, 2):
                P.valu("v_max3_f32 v%d, v%d, v%d, v%d" % (m, m, s + j, s + j + 1), [m, s + j, s + j + 1], [m])
            if not (twopass and h == 0):
                reduce_x(m, "v_max_f32")
            if ONES and h == 1:
                for j in range(4):
                    if big: P.valu("v_mov_b32 v%d, v%d" % (SELT + j, SEL), [SEL], [SELT + j])
                    else: P.valu("v_mov_b32 v%d, 0x3f803f80" % (SELT + j), [], [SELT + j])
        elif name in ("sm0", "sm1"):
            h = int(name[2]); s = SS[h]; m = M0 if h == 0 else M1
            if twopass: m = M1
            if not (twopass and h == 1):
                P.valu("v_mul_f32 v%d, %s, v%d" % (NEG, SNC, m), [m], [NEG])
            if h == 1 and not twopass:
                P.valu("v_fma_f32 v%d, v%d, %s, v%d" % (ALPHA, M0, SC, NEG), [M0, NEG], [ALPHA])
                P.trans("v_exp_f32 v%d, v%d" % (ALPHA, ALPHA), [ALPHA], [ALPHA])
                if not ONES:
                    P.valu("v_add_f32 v%d, v%d, v%d" % (LA, LA, LB), [LA, LB], [LA])
                    P.valu("v_mul_f32 v%d, v%d, v%d" % (LA, LA, ALPHA), [LA, ALPHA], [LA])
            for g in range(NS // 8):
                b = s + 8 * g
                for j in range(8):
                    P.valu("v_fma_f32 v%d, v%d, %s, v%d" % (b + j, b + j, SC, NEG), [b + j, NEG], [b + j])
                for j in range(8):
                    P.trans("v_exp_f32 v%d, v%d" % (b + j, b + j), [b + j], [b + j])
                for j in range(8):
                    if ONES: break
                    acc = LA if (j & 1) == 0 else LB
                    first = (h == 0 and g == 0 and j < 2) or (h == 1 and g == 0 and j == 1 and not twopass)
                    if first:
                        P.valu("v_mov_b32 v%d, v%d" % (acc, b + j), [b + j], [acc])
                    else:
                        P.valu("v_add_f32 v%d, v%d, v%d" % (acc, acc, b + j), [acc, b + j], [acc])
                for j in range(4):
                    d = s + 4 * g + j
                    P.valu("v_cvt_pk_bf16_f32 v%d, v%d, v%d" % (d, b + 2 * j, b + 2 * j + 1),
                           [b + 2 * j, b + 2 * j + 1], [d])
        elif name == "resc":
            if ONES:
                P.valu("v_mul_f32 v%d, v%d, v%d" % (LS, LS, ALPHA), [LS, ALPHA], [LS])
            for o in O:
                for j in range(OW):
                    P.valu("v_mul_f32 v%d, v%d, v%d" % (o + j, o + j, ALPHA), [o + j, ALPHA], [o + j])
        elif name == "epi":
            if ONES:
                P.trans("v_rcp_f32 v%d, v%d" % (RCP, LS), [LS], [RCP])
            else:
                P.valu("v_add_f32 v%d, v%d, v%d" % (LA, LA, LB), [LA, LB], [LA])
                reduce_x(LA, "v_add_f32")
                P.trans("v_rcp_f32 v%d, v%d" % (RCP, LA), [LA], [RCP])
            def cv(o, n):
                for j in range(2 * n):
                    P.valu("v_mul_f32 v%d, v%d, v%d" % (o + j, o + j, RCP), [o + j, RCP], [o + j])
                for j in range(n):
                    P.valu("v_cvt_pk_bf16_f32 v%d, v%d, v%d" % (o + j, o + 2 * j, o + 2 * j + 1),
                           [o + 2 * j, o + 2 * j + 1], [o + j])
            if big:
                for e in range(2):
                    oa, ob = O[2 * e], O[2 * e + 1]
                    cv(oa, 8); cv(ob, 8)
                    for o in (oa, ob):
                        for j in range(4):
                            P.perm("v_permlane32_swap_b32 v%d, v%d" % (o + j, o + 4 + j), [o + j, o + 4 + j])
                    for j in range(8):
                        P.perm("v_permlane16_swap_b32 v%d, v%d" % (oa + j, ob + j), [oa + j, ob + j])
                    P.store4(oa, OA, 64 * e); P.store4(ob, OA32B, 64 * e)
                    P.store4(oa + 4, OA, 128 + 64 * e); P.store4(ob + 4, OA32B, 128 + 64 * e)
            else:
                for e in range(2):
                    ws = []
                    for u in (2 * e, 2 * e + 1):
                        o = O[2 * u]
                        cv(o, 4)
                        P.perm("v_permlane16_swap_b32 v%d, v%d" % (o, o + 2), [o, o + 2])
                        P.perm("v_permlane16_swap_b32 v%d, v%d" % (o + 1, o + 3), [o + 1, o + 3])
                        ws.append(o)
                    for j in range(4):
                        P.perm("v_permlane32_swap_b32 v%d, v%d" % (ws[0] + j, ws[1] + j), [ws[0] + j, ws[1] + j])
                    P.store4(ws[0], OA, 64 * e); P.store4(ws[1], OA, 128 + 64 * e)

    nread = 0
    for pos_k, o in enumerate(mops):
        if o[0] == "v":
            if prio and o[1] in prio:
                P.add(Ins("s_setprio %d" % prio[o[1]], "sync", ([O[-1]] if o[1] == "epi" else []), [], q="V"))
            vwork(o[1])
            if STAMP and vst and o[1] in vst:
                P.add(Ins("s_nop 0" + stamp(), "syncd", [], [], q="V"))
            continue
        if o[0] in ("sync", "rebase"):
            do_ctl(pos_k); continue
        if o[0] == "ls":
            _, h, kk = o
            P.mfma(False, LS, SELT, SS[h] + 4 * kk, h == 0 and kk == 0)
            continue
        j = mm_idx.index(pos_k)
        while nread < len(mm_idx) and nread <= j + AHEAD:
            k = mm_idx[nread]
            if any(mops[c][0] == "sync" and mops[c][1].get("fence") and c not in done_ctl for c in range(pos_k, k)):
                break
            for c in range(pos_k, k):
                if mops[c][0] in ("sync", "rebase"): do_ctl(c)
            issue_read(k); nread += 1
        f = fragof[pos_k]
        if o[0] == "qk":
            _, h, kt, ks = o
            P.mfma(big, SS[h] + SW * kt, f, QFL[ks], ks == 0)
        else:
            _, h, kk, dt = o
            P.mfma(big, O[dt], f, SS[h] + 4 * kk, h == 0 and kk == 0)
    return P

def finish(P, nv, extra=0):
    seq = P.schedule(nv)
    seq = insert_waits(seq, extra)
    seq = insert_nops(seq)
    return seq

def main():
    NV32 = int(os.environ.get("NV32", "8"))
    NV16 = int(os.environ.get("NV16", "4"))
    c = math.log2(math.e) / math.sqrt(128.0)
    L = []
    A = L.append
    hdr = open("standalone__gqa_softmax__near_ridge.s.ref").read().split("\n")
    for line in hdr:
        if line.startswith("; @launch"):
            A("; @launch grid=(256,1,1) block=(512,1,1) lds=163840")
        elif line.startswith(";"):
            A(line)
        else:
            break
    A('.amdgcn_target "amdgcn-amd-amdhsa--gfx950"')
    A(".text")
    A(".globl standalone__gqa_softmax__near_ridge_kernel")
    A(".p2align 8")
    A(".type standalone__gqa_softmax__near_ridge_kernel,@function")
    A("standalone__gqa_softmax__near_ridge_kernel:")
    def sub(txt, b):
        for k in range(1, 8):
            txt = txt.replace("%%%d" % k, "v%d" % (b + k))
        return txt
    lanedec = """
    v_and_b32 %1, 31, v0                   ; r32
    v_lshrrev_b32 %2, 5, v0                ; h
    v_and_b32 %3, 15, v0                   ; r16
    v_lshrrev_b32 %4, 4, v0                ; g (0..3)
    v_lshrrev_b32 %5, 2, v0
    v_and_b32 %5, 3, %5                    ; r4
    v_and_b32 %6, 3, v0                    ; c
"""
    KD = 40; Q32A = 41
    pro = """
    s_cmp_ge_u32 s2, 256
    s_cbranch_scc1 L_end
    s_load_dwordx4 s[4:7], s[0:1], 0
    s_load_dwordx4 s[8:11], s[0:1], 16
    s_load_dwordx2 s[46:47], s[0:1], 40
    v_lshrrev_b32 v1, 6, v0
    v_and_b32 v0, 63, v0
    s_nop 0
    v_readfirstlane_b32 s32, v1            ; wave id
    ; workgroup -> (group, head)
    s_and_b32 s33, s2, 7
    s_lshr_b32 s34, s2, 3
    s_lshl_b32 s33, s33, 3
    s_lshr_b32 s35, s34, 2
    s_add_u32 s33, s33, s35                ; kv group
    s_and_b32 s34, s34, 3
    s_lshl_b32 s35, s33, 2
    s_add_u32 s35, s35, s34                ; q head
    s_mul_i32 s30, s35, 81920              ; q/out head byte offset
    s_mul_i32 s36, s33, 81920              ; kv byte offset
    s_mov_b32 s28, """ + f32hex(c) + """
    s_mov_b32 s29, """ + f32hex(-c) + """
    s_and_b32 s37, s32, 3                  ; simd slot
    s_mul_i32 s38, s37, 80                 ; row base
    s_lshr_b32 s31, s32, 2
    s_xor_b32 s31, s31, 1                  ; 1 for B waves (w<4): T32 then T16
    ; T32 row0: B -> 80s ; A -> 80s+32
    s_lshl_b32 s39, s31, 5
    s_sub_u32 s39, 32, s39
    s_add_u32 s39, s39, s38                ; T32 row0
    s_add_u32 s40, s38, 64                 ; T16 row0
""" + lanedec + """
    ; ---- DMA voffsets:  KD=v40  VD=v1
    s_lshl_b32 s41, s37, 2
    v_add_u32 %7, s41, %4                  ; 4(w&3)+(i>>4)
    v_xor_b32 %7, %7, %3
    v_lshlrev_b32 %7, 4, %7
    v_lshl_or_b32 v40, %4, 8, %7
    s_and_b32 s41, s32, 1
    v_lshlrev_b32 %7, 1, %4
    v_or_b32 %7, s41, %7
    v_xor_b32 %7, %7, %3
    v_lshlrev_b32 %7, 4, %7
    v_lshl_or_b32 v1, %4, 8, %7
    s_waitcnt lgkmcnt(0)
    s_mov_b32 s12, s4
    s_and_b32 s13, s5, 0xffff
    s_mov_b32 s14, 20971520
    s_mov_b32 s15, 0x00020000
    s_mov_b32 s16, s6
    s_and_b32 s17, s7, 0xffff
    s_mov_b32 s18, 5242880
    s_mov_b32 s19, 0x00020000
    s_mov_b32 s20, s8
    s_and_b32 s21, s9, 0xffff
    s_mov_b32 s22, 5242880
    s_mov_b32 s23, 0x00020000
    s_mov_b32 s24, s10
    s_and_b32 s25, s11, 0xffff
    s_mov_b32 s26, 20971520
    s_mov_b32 s27, 0x00020000
    s_lshl_b32 s42, s32, 10                ; lds offset = 1024 w
    s_add_u32 s43, s36, s42                ; kv global offset
    s_lshl_b32 s56, s37, 10
    s_add_u32 s57, s36, s56
    s_xor_b32 s58, s31, 1
    s_lshl_b32 s58, s58, 15
    s_add_u32 s58, s58, s56
    s_lshl_b32 s54, s39, 8
    s_add_u32 s54, s54, s30                ; q32 global offset
    s_lshl_b32 s55, s40, 8
    s_add_u32 s55, s55, s30                ; q16 global offset
"""
    A(sub(pro, 32))
    if STAMP:
        A("".join("    s_mov_b64 s[%d:%d], 0\n" % (64 + 2 * k, 65 + 2 * k) for k in range(12)) + "    s_memrealtime s[88:89]\n" + stamp())
    def dma(ldsoff, sbase, goff, vreg, srd, fl):
        return ("s_add_u32 s44, s42, %d\n    s_mov_b32 m0, s44\n    s_add_u32 s45, %s, %d\n"
                "    buffer_load_dwordx4 v%d, s[%d:%d], s45 offen%s lds\n    " % (ldsoff, sbase, goff, vreg, srd, srd + 3, fl))
    def dma4(ldsoff, sbase, goff, vreg, srd, fl):
        return ("s_add_u32 s44, s56, %d\n    s_mov_b32 m0, s44\n    s_add_u32 s45, %s, %d\n"
                "    buffer_load_dwordx4 v%d, s[%d:%d], s45 offen%s lds\n    " % (ldsoff, sbase, goff, vreg, srd, srd + 3, fl))
    def kdma0():
        return "".join(dma(8192 * n, "s43", 8192 * n, KD, 16, KVF) for n in range(5))
    def kdma1():
        return "".join(dma4(40960 + 4096 * n, "s57", 40960 + 4096 * n, KD, 16, KVF) for n in range(10))
    def q32dma():
        return "".join(dma4(81920 + 4096 * n, "s54", 1024 * n, KD, 12, QF).replace("s56", "s58") for n in range(8))
    def q16dma():
        return "".join(dma4(81920 + 65536 + 4096 * m, "s55", 1024 * m, KD, 12, QF) for m in range(4))
    def vdma(ns):
        return "".join(dma4(81920 + 4096 * n, "s57", 4096 * n, VD, 20, KVF) for n in ns)
    A("    " + kdma0())
    if int(os.environ.get("BAR0", "1")): A("    s_barrier")
    A("    s_cmp_eq_u32 s31, 0")
    A("    s_cbranch_scc1 L_noq")
    A("    " + q32dma())
    A("    s_branch L_q2")
    A("L_noq:")
    A("    " + kdma1())
    A("L_q2:")
    if STAMP: A(stamp())
    addr32 = """
    ; ---- KA32
    v_xor_b32 %7, %2, %3
    v_lshlrev_b32 %7, 4, %7
    v_lshl_or_b32 v8, %1, 8, %7
    v_xor_b32 v9, 32, v8
    v_xor_b32 v10, 64, v8
    v_xor_b32 v11, 0x60, v8
    v_xor_b32 v12, 0x80, v8
    v_xor_b32 v13, 0xa0, v8
    v_xor_b32 v14, 0xc0, v8
    v_xor_b32 v15, 0xe0, v8
    ; ---- VA32: 81920 + (4h+r4)*256 + (8(c&1) + 2 r4 + (g'^h))*16 + 8(c>>1)
    v_lshl_add_u32 %7, %2, 2, %5           ; 4h+r4
    v_lshlrev_b32 %7, 8, %7
    v_and_b32 v16, 1, %6
    v_lshlrev_b32 v16, 3, v16
    v_lshl_add_u32 v16, %5, 1, v16
    v_and_b32 v17, 1, %4
    v_xor_b32 v17, v17, %2
    v_add_u32 v16, v16, v17
    v_lshl_add_u32 %7, v16, 4, %7
    v_lshrrev_b32 v16, 1, %6
    v_lshl_add_u32 %7, v16, 3, %7
    v_add_u32 v16, 0x14000, %7
    v_xor_b32 v17, 32, v16
    v_xor_b32 v18, 64, v16
    v_xor_b32 v19, 0x60, v16
    v_add_u32 %7, s39, %3
    v_lshlrev_b32 %7, 8, %7
    v_and_b32 v20, 1, %4
    v_lshl_add_u32 v20, v20, 1, %2
    v_lshl_add_u32 v20, v20, 4, %7
    v_add_u32 v21, 0x1000, v20
    ; ---- SEL (v26)
    v_xor_b32 %7, %5, %4
    v_and_b32 %7, 1, %7
    v_or_b32 %7, %7, %6
    v_mov_b32 v42, 0x3f803f80
    v_cmp_eq_u32 vcc, 0, %7
    v_cndmask_b32 v26, 0, v42, vcc
    s_lshl_b32 s41, s37, 2
    s_add_u32 s44, s58, 0x14000
    v_add_u32 v42, s41, %6                 ; x = 4(w&3) + (r&3)
    v_xor_b32 v41, v42, %2
    v_lshlrev_b32 v41, 4, v41
    v_lshl_add_u32 v41, %6, 8, v41
    v_lshrrev_b32 %7, 2, %1
    v_lshl_add_u32 v41, %7, 12, v41
    v_add_u32 v41, s44, v41
    v_add_u32 %7, s40, %3
    v_lshlrev_b32 %7, 8, %7
    v_lshl_add_u32 v2, %4, 4, %7
"""
    A(sub(addr32, 32))
    def q32read():
        t = ""
        for ks in range(8):
            d = QF32 + 4 * ks
            t += "v_xor_b32 v%d, 0x%x, v41\n    " % (d, 32 * ks)
        for ks in range(8):
            d = QF32 + 4 * ks
            t += "ds_read_b128 v[%d:%d], v%d\n    " % (d, d + 3, d)
        return t + "s_waitcnt lgkmcnt(0)\n    "
    def q16read():
        t = ""
        for ks in range(4):
            d = QF16L[ks]
            t += "v_xor_b32 v%d, 0x%x, v2\n    " % (d, 64 * ks)
        for ks in range(4):
            d = QF16L[ks]
            t += "ds_read_b128 v[%d:%d], v%d\n    " % (d, d + 3, d)
        return t + "s_waitcnt lgkmcnt(0)\n    "
    def pos(e, d):
        v = os.environ.get(e, d).split(",")
        return (v[0], int(v[1]), int(v[2]))
    X32 = int(os.environ.get('X32', '1'))
    A("    s_cmp_eq_u32 s31, 1")
    A("    s_cbranch_scc1 L_B")
    A("    s_waitcnt vmcnt(10)")
    A("    s_barrier")
    if STAMP: A(stamp())
    A("    " + q32dma())
    A("    s_waitcnt vmcnt(8)")
    A("    s_barrier")
    if STAMP: A(stamp())
    A("    " + vdma(range(8)) + vdma(range(16, 20)))
    A("    s_waitcnt vmcnt(12)")
    if STAMP: A(stamp())
    A("    " + q32read() + vdma(range(8, 16)))
    if int(os.environ.get("PRIOA", "0")): A("    s_setprio %d" % int(os.environ.get("PRIOA", "0")))
    PH = int(os.environ.get("PH", "0"))
    syA = [dict(at=pos("A2", "qk,1,30"), text="s_waitcnt vmcnt(0)\n    s_barrier")]
    prioA = prioB = prio16 = None
    if PH:
        A("    s_setprio %d" % int(os.environ.get("PQA", "2")))
        syA.append(dict(at=("pv", 0, 0), text="s_setprio 2", fence=True, reads=R(S0, 40) + R(S1, 40), nostamp=True))
        prioA = {"sm0": 0, "epi": 0}
        prioB = {"sm0": 0, "epi": 0} if os.environ.get("TPB", "2") != "3" else {"max1": 0, "epi": 0}
    PA = tile(True, syA, twopass=int(os.environ.get("TPA", "1")), vst=os.environ.get("VSTA", "").split(","), prio=prioA)
    seqA = finish(PA, NV32, X32)
    for i in seqA: A("    " + i.text)
    if STAMP: A(stamp())
    A("    s_branch L_fin")
    A("L_B:")
    if PH: A("    s_setprio 2")
    if int(os.environ.get("PRIO", "0")): A("    s_setprio %d" % int(os.environ.get("PRIO", "0")))
    stampn[0] = 2
    A("    s_waitcnt vmcnt(0)")
    if STAMP: A(stamp())
    A("    " + q32read())
    A("    s_barrier")
    if STAMP: A(stamp())
    TPB = int(os.environ.get("TPB", "2"))
    q16 = ""
    for ks in range(4):
        q16 += "buffer_load_dwordx4 v[%d:%d], v2, s[12:15], s30 offen offset:%d%s\n    " % (QF16L[ks], QF16L[ks] + 3, 64 * ks, _fl("Q16F", "none"))
    syB = [dict(at=("qk", 1, 0), text="s_barrier"),
           dict(at=("pv", 0, 0), text=q16 + "s_barrier" + ("\n    s_setprio 2" if PH else ""), fence=(TPB >= 2), reads=(R(S0, 40) + R(S1, 40) if TPB >= 2 else []))]
    P32 = tile(True, syB, twopass=TPB, vst=os.environ.get("VSTB", "").split(","), prio=prioB)
    seq32 = finish(P32, NV32, X32)
    for i in seq32: A("    " + i.text)
    if STAMP: A(stamp())
    if os.environ.get("PRIO16"): A("    s_setprio %d" % int(os.environ.get("PRIO16")))
    addr16 = lanedec + """
    ; ---- KA16 = ((r<<8) | ((g^r)<<4)) ^ (ks<<6)
    v_xor_b32 %7, %4, %3
    v_lshlrev_b32 %7, 4, %7
    v_lshl_or_b32 v208, %3, 8, %7
    v_xor_b32 v209, 64, v208
    v_xor_b32 v210, 0x80, v208
    v_xor_b32 v211, 0xc0, v208
    ; ---- VA16: 81920 + (4g+r4)*256 + (8c1 | 2 r4 | (g&1))*16 + 8 c0
    v_lshl_add_u32 %7, %4, 2, %5
    v_lshlrev_b32 %7, 8, %7
    v_lshrrev_b32 v212, 1, %6
    v_lshlrev_b32 v212, 3, v212
    v_lshl_add_u32 v212, %5, 1, v212
    v_and_b32 v213, 1, %4
    v_add_u32 v212, v212, v213
    v_lshl_add_u32 %7, v212, 4, %7
    v_and_b32 v212, 1, %6
    v_lshl_add_u32 %7, v212, 3, %7
    v_add_u32 v212, 0x14000, %7
    v_xor_b32 v213, 16, v212
    v_xor_b32 v214, 32, v212
    v_xor_b32 v215, 48, v212
    v_xor_b32 v216, 64, v212
    v_xor_b32 v217, 0x50, v212
    v_xor_b32 v218, 0x60, v212
    v_xor_b32 v219, 0x70, v212
    ; ---- OA16 = (row0+r16)*256 + 16 g
    v_add_u32 %7, s40, %3
    v_lshlrev_b32 %7, 8, %7
    v_lshl_add_u32 v220, %4, 4, %7
"""
    A(sub(addr16, 240))
    A("    s_waitcnt vmcnt(8)")
    TP16 = int(os.environ.get("TP16", "0"))
    sy16 = []
    if PH and TP16 == 2:
        A("    s_setprio 2")
        sy16 = [dict(at=("pv", 0, 0), text="s_setprio 2", fence=True, reads=R(S0_16, 20) + R(S1_16, 20), nostamp=True)]
        prio16 = {"sm0": 0, "epi": 0}
    P16 = tile(False, sy16, TP16, prio=prio16)
    seq16 = finish(P16, NV16, int(os.environ.get('X16', '3')))
    for i in seq16: A("    " + i.text)
    A("L_fin:")
    if STAMP:
        stampn[0] = 11
        A(stamp())
        A("    s_waitcnt vmcnt(0)")
        A("    s_memrealtime s[90:91]")
        A("    s_memtime s[92:93]")
        A("    s_waitcnt lgkmcnt(0)")
        A("    s_mov_b32 s48, s46")
        A("    s_and_b32 s49, s47, 0xffff")
        A("    s_mov_b32 s50, 0x1000000")
        A("    s_mov_b32 s51, 0x00020000")
        A("    s_lshl_b32 s52, s2, 3")
        A("    s_add_u32 s52, s52, s32")
        A("    s_mul_i32 s52, s52, 64")
        A("    s_mov_b64 exec, 1")
        A("    v_mov_b32 v1, 0")
        for k in range(15):
            A("    v_mov_b32 v2, s%d" % (64 + 2 * k))
            A("    buffer_store_dword v2, v1, s[48:51], s52 offen offset:%d" % (4 * k))
    A("L_end:")
    A("    s_endpgm")
    A('.section .rodata,"a"')
    A(".p2align 6")
    A(".amdhsa_kernel standalone__gqa_softmax__near_ridge_kernel")
    A("  .amdhsa_next_free_vgpr 256")
    A("  .amdhsa_next_free_sgpr 100")
    A("  .amdhsa_accum_offset 256")
    A("  .amdhsa_group_segment_fixed_size 0")
    A("  .amdhsa_kernarg_size 48")
    A("  .amdhsa_user_sgpr_count 2")
    A("  .amdhsa_user_sgpr_kernarg_segment_ptr 1")
    A("  .amdhsa_system_sgpr_workgroup_id_x 1")
    A(".end_amdhsa_kernel")
    open(OUT, "w").write("\n".join(L) + "\n")
    def stat(seq):
        from collections import Counter
        return Counter(i.kind for i in seq)
    print("T16", stat(seq16)); print("T32", stat(seq32))

main()
```

```python
import struct, sys, math

import os
OUT = os.environ.get("OUT", "standalone__gqa_softmax__near_ridge.s")

def _fl(e, d):
    v = os.environ.get(e, d)
    return (" " + v) if v and v != "none" else ""
STF = _fl("STF", "sc1"); QF = _fl("QF", "nt"); KVF = _fl("KVF", "nt")
def f32hex(x):
    return "0x%08x" % struct.unpack("<I", struct.pack("<f", x))[0]

def vr(a, n):
    return "v%d" % a if n == 1 else "v[%d:%d]" % (a, a + n - 1)

class Ins:
    __slots__ = ("text", "kind", "reads", "writes", "srcc", "q", "units", "preds", "pos", "idx", "raw")
    def __init__(self, text, kind, reads=(), writes=(), srcc=(), q="V", units=1):
        self.text = text; self.kind = kind
        self.reads = list(reads); self.writes = list(writes); self.srcc = list(srcc)
        self.q = q; self.units = units; self.preds = []; self.pos = None; self.raw = []

def R(a, n=1):
    return list(range(a, a + n))

MF = ("mfma32", "mfma16")
def mf_lat(kind):
    return 12 if kind == "mfma32" else 8

class Prog:
    def __init__(self):
        self.ins = []
    def add(self, i):
        self.ins.append(i); return i
    def valu(self, text, reads, writes, q="V"):
        return self.add(Ins(text, "valu", reads, writes, q=q))
    def trans(self, text, reads, writes, q="V"):
        return self.add(Ins(text, "trans", reads, writes, q=q, units=2))
    def perm(self, text, regs, q="V"):
        return self.add(Ins(text, "perm", regs, regs, q=q))
    def mfma(self, big, d, a, b, first):
        n = 16 if big else 4
        name = "v_mfma_f32_32x32x16_bf16" if big else "v_mfma_f32_16x16x32_bf16"
        c = "0" if first else vr(d, n)
        reads = R(a, 4) + R(b, 4) + ([] if first else R(d, n))
        return self.add(Ins("%s %s, %s, %s, %s" % (name, vr(d, n), vr(a, 4), vr(b, 4), c),
                            "mfma32" if big else "mfma16", reads, R(d, n),
                            srcc=([] if first else R(d, n)), q="M"))
    def dsr128(self, d, addr, off, tok):
        return self.add(Ins("ds_read_b128 %s, v%d offset:%d" % (vr(d, 4), addr, off), "dsr",
                            [addr, tok], R(d, 4), q="M"))
    def dstr(self, d, addr, off, tok):
        return self.add(Ins("ds_read_b64_tr_b16 %s, v%d offset:%d" % (vr(d, 2), addr, off), "dsr",
                            [addr, tok], R(d, 2), q="M"))
    def sync(self, text, tok):
        return self.add(Ins(text, "sync", [], [tok], q="M"))
    def store4(self, d, addr, off):
        return self.add(Ins("buffer_store_dwordx4 %s, v%d, s[24:27], s30 offen offset:%d%s" % (vr(d, 4), addr, off, STF),
                            "store", R(d, 4) + [addr], [], q="V"))

    def build_dag(self):
        lastw = {}; readers = {}
        for k, i in enumerate(self.ins):
            i.idx = k
            ps = set()
            for r in i.reads:
                if r in lastw:
                    ps.add(lastw[r]); i.raw.append(lastw[r])
            for w in i.writes:
                if w in lastw: ps.add(lastw[w])
                for rd in readers.get(w, ()): ps.add(rd)
            ps.discard(i)
            i.preds = list(ps)
            for r in i.reads:
                readers.setdefault(r, []).append(i)
            for w in i.writes:
                lastw[w] = i; readers[w] = []

    def schedule(self, nv, order=None):
        self.build_dag()
        M = [i for i in self.ins if i.q == "M"]
        V = [i for i in self.ins if i.q == "V"]
        out = []
        def dag_ready(i):
            return all(p.pos is not None for p in i.preds)
        def lat_ready(i):
            for p in i.raw:
                if p.kind in MF and i.kind not in MF:
                    if len(out) - p.pos - 1 < mf_lat(p.kind) + 2: return False
            return True
        def emit(i):
            i.pos = len(out); out.append(i)
        mi = vi = 0
        while mi < len(M) or vi < len(V):
            prog = False
            while mi < len(M) and dag_ready(M[mi]):
                i = M[mi]; mi += 1; emit(i); prog = True
                if i.kind in MF: break
            budget = nv
            while vi < len(V) and budget > 0 and dag_ready(V[vi]):
                m_ok = mi < len(M) and dag_ready(M[mi])
                if m_ok and not lat_ready(V[vi]): break
                i = V[vi]; vi += 1; emit(i); prog = True
                budget -= i.units
            assert prog, "scheduler stuck"
        return out

def insert_waits(seq, extra=0):
    out = []; pend = []
    for i in seq:
        touched = set(i.reads) | set(i.writes)
        need = -1
        for k, regs in enumerate(pend):
            if regs & touched: need = k
        if need >= 0:
            cov = 0; k = need + 1
            while k < len(pend) and cov + len(pend[k]) <= 4 * extra:
                cov += len(pend[k]); k += 1
            need = k - 1
            left = len(pend) - (need + 1)
            out.append(Ins("s_waitcnt lgkmcnt(%d)" % min(left, 15), "wait"))
            pend = pend[need + 1:]
        out.append(i)
        if i.kind == "syncd":
            pend = []
        if i.kind == "dsr":
            pend.append(set(i.writes))
    return out

def insert_nops(seq):
    out = []; pos = 0
    lastw = {}
    lastc = {}
    lastst = {}
    for i in seq:
        need = 0
        def req(p, ws):
            nonlocal need
            d = pos - p - 1
            if ws - d > need: need = ws - d
        ismf = i.kind in MF
        isv = i.kind in ("valu", "trans", "perm")
        for r in i.reads:
            if not isinstance(r, int) or r not in lastw: continue
            p, pi = lastw[r]
            if pi.kind in ("valu", "trans", "perm"):
                if ismf: req(p, 2)
                elif i.kind == "perm": req(p, 2)
                elif pi.kind == "trans" and i.kind == "valu": req(p, 1)
                elif pi.kind == "trans": req(p, 1)
            elif pi.kind in MF:
                if ismf:
                    if r in i.srcc and pi.kind == i.kind and pi.writes == i.srcc:
                        pass
                    elif r in i.srcc:
                        req(p, 10 if pi.kind == "mfma32" else 6)
                    else:
                        req(p, mf_lat(pi.kind))
                else:
                    req(p, mf_lat(pi.kind))
        for w in i.writes:
            if not isinstance(w, int): continue
            if w in lastw:
                p, pi = lastw[w]
                if pi.kind in MF:
                    if ismf:
                        if not (pi.kind == i.kind and pi.writes == i.writes):
                            req(p, 10 if pi.kind == "mfma32" else 6)
                    else:
                        req(p, mf_lat(pi.kind))
            if w in lastc and not ismf:
                p, pi = lastc[w]
                req(p, 7 if pi.kind == "mfma32" else 3)
            if w in lastst:
                req(lastst[w], 2)
        if need > 0:
            while need > 0:
                n = min(need, 16)
                out.append(Ins("s_nop %d" % (n - 1), "nop")); pos += n; need -= n
        out.append(i)
        for w in i.writes:
            if isinstance(w, int): lastw[w] = (pos, i)
        for c in i.srcc: lastc[c] = (pos, i)
        if i.kind == "store":
            for r in i.reads: lastst[r] = pos
        pos += 1
    return out

KA32 = 8; VA32 = 16; OA32 = 20
M0, M1, NEG, ALPHA, LA, LB, T0, RCP = 22, 23, 24, 25, 26, 27, 3, 25
VD = 1; Q16A = 2; SEL = 26
ONES = int(os.environ.get("ONES", "1"))
FR = [32, 36, 40, 44, 48, 52]
QF32 = 56; S0 = 88; S1 = 168
O32 = [56, 72, 136, 152]
QF16L = [248, 252, 4, 28]; S0_16 = 56; S1_16 = 136; O16 = 176
KA16 = 208; VA16 = 212; OA16 = 220
FR16 = [32, 36, 40, 44, 48, 52, 224, 228, 232, 236]
OA32B = 21
SC = "s28"; SNC = "s29"

lbl = [0]
import os
STAMP = int(os.environ.get("STAMP", "0"))
stampn = [0]
def stamp():
    if not STAMP: return ""
    k = stampn[0]; stampn[0] += 1
    return "\n    s_memtime s[%d:%d]\n    s_waitcnt lgkmcnt(0)" % (64 + 2 * k, 65 + 2 * k)
def sync_text(vm, cond, post=""):
    body = "s_waitcnt vmcnt(%d)\n    s_barrier%s" % (vm, post)
    if not cond:
        return body + stamp()
    lbl[0] += 1
    return ("s_cmp_eq_u32 s31, 0\n    s_cbranch_scc1 L_skip%d\n    %s\nL_skip%d:" % (lbl[0], body, lbl[0])) + stamp()

def tile(big, syncs=(), twopass=False, vst=(), prio=None):
    P = Prog()
    if big:
        NKT, NKS, SW = 5, 8, 16
        KA, VA, OA = KA32, VA32, OA32
        QFL, SS = [QF32 + 4 * i for i in range(8)], (S0, S1)
        NDT, NKK, OW = 4, 10, 16
        O = O32; fr = FR
        KT_OFF = 8192; KK_OFF, T_OFF = 4096, 2048
        AHEAD = 4
        SELT, LS = 8, 12
    else:
        NKT, NKS, SW = 10, 4, 4
        KA, VA, OA = KA16, VA16, OA16
        QFL, SS = QF16L, (S0_16, S1_16)
        NDT, NKK, OW = 8, 5, 4
        O = [O16 + 4 * i for i in range(8)]; fr = FR16
        KT_OFF = 4096; KK_OFF, T_OFF = 8192, 4096
        AHEAD = 8
        SELT, LS = 208, 240
    NS = NKT * SW
    frc = [0]
    def nextfr():
        f = fr[frc[0] % len(fr)]; frc[0] += 1; return f

    mops = []
    def chk(kind, h, cnt):
        for sy in syncs:
            if sy["at"] == (kind, h, cnt):
                mops.append(("sync", sy))
    def qk(h):
        n = 0
        for kt in range(NKT):
            for ks in range(NKS):
                chk("qk", h, n)
                if h == 1 and n == 0:
                    mops.append(("rebase", KA, NKS))
                mops.append(("qk", h, kt, ks)); n += 1
    def pv(h):
        n = 0
        for kk in range(NKK):
            for dt in range(NDT):
                chk("pv", h, n)
                if h == 1 and n == 0:
                    mops.append(("rebase", VA, NDT))
                mops.append(("pv", h, kk, dt)); n += 1
                if ONES and dt == 0:
                    mops.append(("ls", h, kk))

    if twopass == 3:
        twopass = 0
        qk(0); mops.append(("v", "max0")); qk(1); mops.append(("v", "sm0")); mops.append(("v", "max1"))
        mops.append(("v", "sm1")); pv(0); mops.append(("v", "resc")); pv(1); mops.append(("v", "epi"))
    elif twopass == 2:
        qk(0); mops.append(("v", "max0")); qk(1); mops.append(("v", "max1")); mops.append(("v", "sm0"))
        mops.append(("v", "sm1"))
        pv(0); pv(1); mops.append(("v", "epi"))
    elif twopass:
        qk(0); mops.append(("v", "max0")); qk(1); mops.append(("v", "max1")); mops.append(("v", "sm0"))
        pv(0); mops.append(("v", "sm1")); pv(1); mops.append(("v", "epi"))
    else:
        qk(0); mops.append(("v", "max0")); qk(1); mops.append(("v", "sm0")); mops.append(("v", "max1"))
        pv(0); mops.append(("v", "sm1")); mops.append(("v", "resc")); pv(1); mops.append(("v", "epi"))

    mm_idx = [k for k, o in enumerate(mops) if o[0] in ("qk", "pv")]
    fragof = {}
    issued = set()
    def issue_read(k):
        o = mops[k]
        f = nextfr(); fragof[k] = f
        if o[0] == "qk":
            _, h, kt, ks = o
            P.dsr128(f, KA + ks, kt * KT_OFF, "K%d" % h)
        else:
            _, h, kk, dt = o
            P.dstr(f, VA + dt, kk * KK_OFF, "V%d" % h)
            P.dstr(f + 2, VA + dt, kk * KK_OFF + T_OFF, "V%d" % h)
        issued.add(k)
    done_ctl = set()
    def do_ctl(k):
        o = mops[k]
        if k in done_ctl: return
        done_ctl.add(k)
        if o[0] == "sync":
            sy = o[1]
            si = P.sync(sy["text"] + ("" if sy.get("nostamp") else stamp()), sy.get("tok", "none"))
            si.writes = si.writes + list(sy.get("writes", ()))
            si.reads = si.reads + list(sy.get("reads", ()))
            if sy.get("kind"): si.kind = sy["kind"]
        elif o[0] == "rebase":
            for j in range(o[2]):
                P.valu("v_add_u32 v%d, 0xa000, v%d" % (o[1] + j, o[1] + j), [o[1] + j], [o[1] + j], q="M")

    def reduce_x(x, op):
        perms = ["v_permlane32_swap_b32"] if big else ["v_permlane16_swap_b32", "v_permlane32_swap_b32"]
        for pm in perms:
            P.valu("v_mov_b32 v%d, v%d" % (T0, x), [x], [T0])
            P.perm("%s v%d, v%d" % (pm, x, T0), [x, T0])
            P.valu("%s v%d, v%d, v%d" % (op, x, x, T0), [x, T0], [x])

    def vwork(name):
        if name in ("max0", "max1"):
            h = int(name[3]); s = SS[h]; m = M0 if h == 0 else M1
            if h == 0:
                P.valu("v_max_f32 v%d, v%d, v%d" % (m, s, s + 1), [s, s + 1], [m]); st = 2
            else:
                P.valu("v_max3_f32 v%d, v%d, v%d, v%d" % (m, M0, s, s + 1), [M0, s, s + 1], [m]); st = 2
            for j in range(st, NS, 2):
                P.valu("v_max3_f32 v%d, v%d, v%d, v%d" % (m, m, s + j, s + j + 1), [m, s + j, s + j + 1], [m])
            if not (twopass and h == 0):
                reduce_x(m, "v_max_f32")
            if ONES and h == 1:
                for j in range(4):
                    if big: P.valu("v_mov_b32 v%d, v%d" % (SELT + j, SEL), [SEL], [SELT + j])
                    else: P.valu("v_mov_b32 v%d, 0x3f803f80" % (SELT + j), [], [SELT + j])
        elif name in ("sm0", "sm1"):
            h = int(name[2]); s = SS[h]; m = M0 if h == 0 else M1
            if twopass: m = M1
            if not (twopass and h == 1):
                P.valu("v_mul_f32 v%d, %s, v%d" % (NEG, SNC, m), [m], [NEG])
            if h == 1 and not twopass:
                P.valu("v_fma_f32 v%d, v%d, %s, v%d" % (ALPHA, M0, SC, NEG), [M0, NEG], [ALPHA])
                P.trans("v_exp_f32 v%d, v%d" % (ALPHA, ALPHA), [ALPHA], [ALPHA])
                if not ONES:
                    P.valu("v_add_f32 v%d, v%d, v%d" % (LA, LA, LB), [LA, LB], [LA])
                    P.valu("v_mul_f32 v%d, v%d, v%d" % (LA, LA, ALPHA), [LA, ALPHA], [LA])
            for g in range(NS // 8):
                b = s + 8 * g
                for j in range(8):
                    P.valu("v_fma_f32 v%d, v%d, %s, v%d" % (b + j, b + j, SC, NEG), [b + j, NEG], [b + j])
                for j in range(8):
                    P.trans("v_exp_f32 v%d, v%d" % (b + j, b + j), [b + j], [b + j])
                for j in range(8):
                    if ONES: break
                    acc = LA if (j & 1) == 0 else LB
                    first = (h == 0 and g == 0 and j < 2) or (h == 1 and g == 0 and j == 1 and not twopass)
                    if first:
                        P.valu("v_mov_b32 v%d, v%d" % (acc, b + j), [b + j], [acc])
                    else:
                        P.valu("v_add_f32 v%d, v%d, v%d" % (acc, acc, b + j), [acc, b + j], [acc])
                for j in range(4):
                    d = s + 4 * g + j
                    P.valu("v_cvt_pk_bf16_f32 v%d, v%d, v%d" % (d, b + 2 * j, b + 2 * j + 1),
                           [b + 2 * j, b + 2 * j + 1], [d])
        elif name == "resc":
            if ONES:
                P.valu("v_mul_f32 v%d, v%d, v%d" % (LS, LS, ALPHA), [LS, ALPHA], [LS])
            for o in O:
                for j in range(OW):
                    P.valu("v_mul_f32 v%d, v%d, v%d" % (o + j, o + j, ALPHA), [o + j, ALPHA], [o + j])
        elif name == "epi":
            if ONES:
                P.trans("v_rcp_f32 v%d, v%d" % (RCP, LS), [LS], [RCP])
            else:
                P.valu("v_add_f32 v%d, v%d, v%d" % (LA, LA, LB), [LA, LB], [LA])
                reduce_x(LA, "v_add_f32")
                P.trans("v_rcp_f32 v%d, v%d" % (RCP, LA), [LA], [RCP])
            def cv(o, n):
                for j in range(2 * n):
                    P.valu("v_mul_f32 v%d, v%d, v%d" % (o + j, o + j, RCP), [o + j, RCP], [o + j])
                for j in range(n):
                    P.valu("v_cvt_pk_bf16_f32 v%d, v%d, v%d" % (o + j, o + 2 * j, o + 2 * j + 1),
                           [o + 2 * j, o + 2 * j + 1], [o + j])
            if big:
                for e in range(2):
                    oa, ob = O[2 * e], O[2 * e + 1]
                    cv(oa, 8); cv(ob, 8)
                    for o in (oa, ob):
                        for j in range(4):
                            P.perm("v_permlane32_swap_b32 v%d, v%d" % (o + j, o + 4 + j), [o + j, o + 4 + j])
                    for j in range(8):
                        P.perm("v_permlane16_swap_b32 v%d, v%d" % (oa + j, ob + j), [oa + j, ob + j])
                    P.store4(oa, OA, 64 * e); P.store4(ob, OA32B, 64 * e)
                    P.store4(oa + 4, OA, 128 + 64 * e); P.store4(ob + 4, OA32B, 128 + 64 * e)
            else:
                for e in range(2):
                    ws = []
                    for u in (2 * e, 2 * e + 1):
                        o = O[2 * u]
                        cv(o, 4)
                        P.perm("v_permlane16_swap_b32 v%d, v%d" % (o, o + 2), [o, o + 2])
                        P.perm("v_permlane16_swap_b32 v%d, v%d" % (o + 1, o + 3), [o + 1, o + 3])
                        ws.append(o)
                    for j in range(4):
                        P.perm("v_permlane32_swap_b32 v%d, v%d" % (ws[0] + j, ws[1] + j), [ws[0] + j, ws[1] + j])
                    P.store4(ws[0], OA, 64 * e); P.store4(ws[1], OA, 128 + 64 * e)

    nread = 0
    for pos_k, o in enumerate(mops):
        if o[0] == "v":
            if prio and o[1] in prio:
                P.add(Ins("s_setprio %d" % prio[o[1]], "sync", ([O[-1]] if o[1] == "epi" else []), [], q="V"))
            vwork(o[1])
            if STAMP and vst and o[1] in vst:
                P.add(Ins("s_nop 0" + stamp(), "syncd", [], [], q="V"))
            continue
        if o[0] in ("sync", "rebase"):
            do_ctl(pos_k); continue
        if o[0] == "ls":
            _, h, kk = o
            P.mfma(False, LS, SELT, SS[h] + 4 * kk, h == 0 and kk == 0)
            continue
        j = mm_idx.index(pos_k)
        while nread < len(mm_idx) and nread <= j + AHEAD:
            k = mm_idx[nread]
            if any(mops[c][0] == "sync" and mops[c][1].get("fence") and c not in done_ctl for c in range(pos_k, k)):
                break
            for c in range(pos_k, k):
                if mops[c][0] in ("sync", "rebase"): do_ctl(c)
            issue_read(k); nread += 1
        f = fragof[pos_k]
        if o[0] == "qk":
            _, h, kt, ks = o
            P.mfma(big, SS[h] + SW * kt, f, QFL[ks], ks == 0)
        else:
            _, h, kk, dt = o
            P.mfma(big, O[dt], f, SS[h] + 4 * kk, h == 0 and kk == 0)
    return P

def finish(P, nv, extra=0):
    seq = P.schedule(nv)
    seq = insert_waits(seq, extra)
    seq = insert_nops(seq)
    return seq

def main():
    NV32 = int(os.environ.get("NV32", "8"))
    NV16 = int(os.environ.get("NV16", "4"))
    c = math.log2(math.e) / math.sqrt(128.0)
    L = []
    A = L.append
    hdr = open("standalone__gqa_softmax__near_ridge.s.ref").read().split("\n")
    for line in hdr:
        if line.startswith("; @launch"):
            A("; @launch grid=(256,1,1) block=(512,1,1) lds=163840")
        elif line.startswith(";"):
            A(line)
        else:
            break
    A('.amdgcn_target "amdgcn-amd-amdhsa--gfx950"')
    A(".text")
    A(".globl standalone__gqa_softmax__near_ridge_kernel")
    A(".p2align 8")
    A(".type standalone__gqa_softmax__near_ridge_kernel,@function")
    A("standalone__gqa_softmax__near_ridge_kernel:")
    def sub(txt, b):
        for k in range(1, 8):
            txt = txt.replace("%%%d" % k, "v%d" % (b + k))
        return txt
    lanedec = """
    v_and_b32 %1, 31, v0                   ; r32
    v_lshrrev_b32 %2, 5, v0                ; h
    v_and_b32 %3, 15, v0                   ; r16
    v_lshrrev_b32 %4, 4, v0                ; g (0..3)
    v_lshrrev_b32 %5, 2, v0
    v_and_b32 %5, 3, %5                    ; r4
    v_and_b32 %6, 3, v0                    ; c
"""
    KD = 40; Q32A = 41
    pro = """
    s_cmp_ge_u32 s2, 256
    s_cbranch_scc1 L_end
    s_load_dwordx4 s[4:7], s[0:1], 0
    s_load_dwordx4 s[8:11], s[0:1], 16
    s_load_dwordx2 s[46:47], s[0:1], """ + ("32" if os.environ.get("DBG") else "40") + """
    v_lshrrev_b32 v1, 6, v0
    v_and_b32 v0, 63, v0
    s_nop 0
    v_readfirstlane_b32 s32, v1            ; wave id
    ; workgroup -> (group, head)
    s_and_b32 s33, s2, 7
    s_lshr_b32 s34, s2, 3
    s_lshl_b32 s33, s33, 3
    s_lshr_b32 s35, s34, 2
    s_add_u32 s33, s33, s35                ; kv group
    s_and_b32 s34, s34, 3
    s_lshl_b32 s35, s33, 2
    s_add_u32 s35, s35, s34                ; q head
    s_mul_i32 s30, s35, 81920              ; q/out head byte offset
    s_mul_i32 s36, s33, 81920              ; kv byte offset
    s_mov_b32 s28, """ + f32hex(c) + """
    s_mov_b32 s29, """ + f32hex(-c) + """
    s_and_b32 s37, s32, 3                  ; simd slot
    s_mul_i32 s38, s37, 80                 ; row base
    s_lshr_b32 s31, s32, 2
    s_xor_b32 s31, s31, 1                  ; 1 for B waves (w<4): T32 then T16
    ; T32 row0: B -> 80s ; A -> 80s+32
    s_lshl_b32 s39, s31, 5
    s_sub_u32 s39, 32, s39
    s_add_u32 s39, s39, s38                ; T32 row0
    s_add_u32 s40, s38, 64                 ; T16 row0
""" + lanedec + """
    ; ---- DMA voffsets:  KD=v40  VD=v1
    s_lshl_b32 s41, s37, 2
    v_add_u32 %7, s41, %4                  ; 4(w&3)+(i>>4)
    v_xor_b32 %7, %7, %3
    v_lshlrev_b32 %7, 4, %7
    v_lshl_or_b32 v40, %4, 8, %7
    s_and_b32 s41, s32, 1
    v_lshlrev_b32 %7, 1, %4
    v_or_b32 %7, s41, %7
    v_xor_b32 %7, %7, %3
    v_lshlrev_b32 %7, 4, %7
    v_lshl_or_b32 v1, %4, 8, %7
    s_waitcnt lgkmcnt(0)
    s_mov_b32 s12, s4
    s_and_b32 s13, s5, 0xffff
    s_mov_b32 s14, 20971520
    s_mov_b32 s15, 0x00020000
    s_mov_b32 s16, s6
    s_and_b32 s17, s7, 0xffff
    s_mov_b32 s18, 5242880
    s_mov_b32 s19, 0x00020000
    s_mov_b32 s20, s8
    s_and_b32 s21, s9, 0xffff
    s_mov_b32 s22, 5242880
    s_mov_b32 s23, 0x00020000
    s_mov_b32 s24, s10
    s_and_b32 s25, s11, 0xffff
    s_mov_b32 s26, 20971520
    s_mov_b32 s27, 0x00020000
    s_lshl_b32 s42, s32, 10                ; lds offset = 1024 w
    s_add_u32 s43, s36, s42                ; kv global offset
    s_lshl_b32 s56, s37, 10
    s_add_u32 s57, s36, s56
    s_xor_b32 s58, s31, 1
    s_lshl_b32 s58, s58, 15
    s_add_u32 s58, s58, s56
    s_lshl_b32 s54, s39, 8
    s_add_u32 s54, s54, s30                ; q32 global offset
    s_lshl_b32 s55, s40, 8
    s_add_u32 s55, s55, s30                ; q16 global offset
"""
    A(sub(pro, 32))
    if STAMP:
        A("".join("    s_mov_b64 s[%d:%d], 0\n" % (64 + 2 * k, 65 + 2 * k) for k in range(12)) + "    s_memrealtime s[88:89]\n" + stamp())
    def dma(ldsoff, sbase, goff, vreg, srd, fl):
        return ("s_add_u32 s44, s42, %d\n    s_mov_b32 m0, s44\n    s_add_u32 s45, %s, %d\n"
                "    buffer_load_dwordx4 v%d, s[%d:%d], s45 offen%s lds\n    " % (ldsoff, sbase, goff, vreg, srd, srd + 3, fl))
    def dma4(ldsoff, sbase, goff, vreg, srd, fl):
        return ("s_add_u32 s44, s56, %d\n    s_mov_b32 m0, s44\n    s_add_u32 s45, %s, %d\n"
                "    buffer_load_dwordx4 v%d, s[%d:%d], s45 offen%s lds\n    " % (ldsoff, sbase, goff, vreg, srd, srd + 3, fl))
    def kdma0():
        return "".join(dma(8192 * n, "s43", 8192 * n, KD, 16, KVF) for n in range(5))
    def kdma1():
        return "".join(dma4(40960 + 4096 * n, "s57", 40960 + 4096 * n, KD, 16, KVF) for n in range(10))
    def q32dma():
        return "".join(dma4(81920 + 4096 * n, "s54", 1024 * n, KD, 12, QF).replace("s56", "s58") for n in range(8))
    def q16dma():
        return "".join(dma4(81920 + 65536 + 4096 * m, "s55", 1024 * m, KD, 12, QF) for m in range(4))
    def vdma(ns):
        return "".join(dma4(81920 + 4096 * n, "s57", 4096 * n, VD, 20, KVF) for n in ns)
    A("    " + kdma0())
    if int(os.environ.get("BAR0", "1")): A("    s_barrier")
    A("    s_cmp_eq_u32 s31, 0")
    A("    s_cbranch_scc1 L_noq")
    A("    " + q32dma())
    A("    s_branch L_q2")
    A("L_noq:")
    A("    " + kdma1())
    A("L_q2:")
    if STAMP: A(stamp())
    addr32 = """
    ; ---- KA32
    v_xor_b32 %7, %2, %3
    v_lshlrev_b32 %7, 4, %7
    v_lshl_or_b32 v8, %1, 8, %7
    v_xor_b32 v9, 32, v8
    v_xor_b32 v10, 64, v8
    v_xor_b32 v11, 0x60, v8
    v_xor_b32 v12, 0x80, v8
    v_xor_b32 v13, 0xa0, v8
    v_xor_b32 v14, 0xc0, v8
    v_xor_b32 v15, 0xe0, v8
    ; ---- VA32: 81920 + (4h+r4)*256 + (8(c&1) + 2 r4 + (g'^h))*16 + 8(c>>1)
    v_lshl_add_u32 %7, %2, 2, %5           ; 4h+r4
    v_lshlrev_b32 %7, 8, %7
    v_and_b32 v16, 1, %6
    v_lshlrev_b32 v16, 3, v16
    v_lshl_add_u32 v16, %5, 1, v16
    v_and_b32 v17, 1, %4
    v_xor_b32 v17, v17, %2
    v_add_u32 v16, v16, v17
    v_lshl_add_u32 %7, v16, 4, %7
    v_lshrrev_b32 v16, 1, %6
    v_lshl_add_u32 %7, v16, 3, %7
    v_add_u32 v16, 0x14000, %7
    v_xor_b32 v17, 32, v16
    v_xor_b32 v18, 64, v16
    v_xor_b32 v19, 0x60, v16
    v_add_u32 %7, s39, %3
    v_lshlrev_b32 %7, 8, %7
    v_and_b32 v20, 1, %4
    v_lshl_add_u32 v20, v20, 1, %2
    v_lshl_add_u32 v20, v20, 4, %7
    v_add_u32 v21, 0x1000, v20
    ; ---- SEL (v26)
    v_xor_b32 %7, %5, %4
    v_and_b32 %7, 1, %7
    v_or_b32 %7, %7, %6
    v_mov_b32 v42, 0x3f803f80
    v_cmp_eq_u32 vcc, 0, %7
    v_cndmask_b32 v26, 0, v42, vcc
    s_lshl_b32 s41, s37, 2
    s_add_u32 s44, s58, 0x14000
    v_add_u32 v42, s41, %6                 ; x = 4(w&3) + (r&3)
    v_xor_b32 v41, v42, %2
    v_lshlrev_b32 v41, 4, v41
    v_lshl_add_u32 v41, %6, 8, v41
    v_lshrrev_b32 %7, 2, %1
    v_lshl_add_u32 v41, %7, 12, v41
    v_add_u32 v41, s44, v41
    v_add_u32 %7, s40, %3
    v_lshlrev_b32 %7, 8, %7
    v_lshl_add_u32 v2, %4, 4, %7
"""
    A(sub(addr32, 32))
    def q32read():
        t = ""
        for ks in range(8):
            d = QF32 + 4 * ks
            t += "v_xor_b32 v%d, 0x%x, v41\n    " % (d, 32 * ks)
        for ks in range(8):
            d = QF32 + 4 * ks
            t += "ds_read_b128 v[%d:%d], v%d\n    " % (d, d + 3, d)
        return t + "s_waitcnt lgkmcnt(0)\n    "
    def q16read():
        t = ""
        for ks in range(4):
            d = QF16L[ks]
            t += "v_xor_b32 v%d, 0x%x, v2\n    " % (d, 64 * ks)
        for ks in range(4):
            d = QF16L[ks]
            t += "ds_read_b128 v[%d:%d], v%d\n    " % (d, d + 3, d)
        return t + "s_waitcnt lgkmcnt(0)\n    "
    def pos(e, d):
        v = os.environ.get(e, d).split(",")
        return (v[0], int(v[1]), int(v[2]))
    X32 = int(os.environ.get('X32', '1'))
    A("    s_cmp_eq_u32 s31, 1")
    A("    s_cbranch_scc1 L_B")
    A("    s_waitcnt vmcnt(10)")
    A("    s_barrier")
    if STAMP: A(stamp())
    A("    " + q32dma())
    A("    s_waitcnt vmcnt(8)")
    A("    s_barrier")
    if STAMP: A(stamp())
    A("    " + vdma(range(8)) + vdma(range(16, 20)))
    A("    s_waitcnt vmcnt(12)")
    if STAMP: A(stamp())
    A("    " + q32read() + vdma(range(8, 16)))
    if int(os.environ.get("PRIOA", "0")): A("    s_setprio %d" % int(os.environ.get("PRIOA", "0")))
    PH = int(os.environ.get("PH", "0"))
    syA = [dict(at=pos("A2", "qk,1,30"), text="s_waitcnt vmcnt(0)\n    s_barrier")]
    prioA = prioB = prio16 = None
    if PH:
        A("    s_setprio %d" % int(os.environ.get("PQA", "2")))
        syA.append(dict(at=("pv", 0, 0), text="s_setprio 2", fence=True, reads=R(S0, 40) + R(S1, 40), nostamp=True))
        prioA = {"sm0": 0, "epi": 0}
        prioB = {"sm0": 0, "epi": 0} if os.environ.get("TPB", "2") != "3" else {"max1": 0, "epi": 0}
    PA = tile(True, syA, twopass=int(os.environ.get("TPA", "1")), vst=os.environ.get("VSTA", "").split(","), prio=prioA)
    seqA = finish(PA, NV32, X32)
    for i in seqA: A("    " + i.text)
    if STAMP: A(stamp())
    A("    s_branch L_fin")
    A("L_B:")
    if PH: A("    s_setprio 2")
    if int(os.environ.get("PRIO", "0")): A("    s_setprio %d" % int(os.environ.get("PRIO", "0")))
    stampn[0] = 2
    A("    s_waitcnt vmcnt(0)")
    if STAMP: A(stamp())
    A("    " + q32read())
    A("    s_barrier")
    if STAMP: A(stamp())
    TPB = int(os.environ.get("TPB", "2"))
    q16 = ""
    for ks in range(4):
        q16 += "buffer_load_dwordx4 v[%d:%d], v2, s[12:15], s30 offen offset:%d%s\n    " % (QF16L[ks], QF16L[ks] + 3, 64 * ks, _fl("Q16F", "none"))
    syB = [dict(at=("qk", 1, 0), text="s_barrier"),
           dict(at=("pv", 0, 0), text=q16 + "s_barrier" + ("\n    s_setprio 2" if PH else ""), fence=(TPB >= 2), reads=(R(S0, 40) + R(S1, 40) if TPB >= 2 else []))]
    P32 = tile(True, syB, twopass=TPB, vst=os.environ.get("VSTB", "").split(","), prio=prioB)
    seq32 = finish(P32, NV32, X32)
    for i in seq32: A("    " + i.text)
    if STAMP: A(stamp())
    if os.environ.get("PRIO16"): A("    s_setprio %d" % int(os.environ.get("PRIO16")))
    addr16 = lanedec + """
    ; ---- KA16 = ((r<<8) | ((g^r)<<4)) ^ (ks<<6)
    v_xor_b32 %7, %4, %3
    v_lshlrev_b32 %7, 4, %7
    v_lshl_or_b32 v208, %3, 8, %7
    v_xor_b32 v209, 64, v208
    v_xor_b32 v210, 0x80, v208
    v_xor_b32 v211, 0xc0, v208
    ; ---- VA16: 81920 + (4g+r4)*256 + (8c1 | 2 r4 | (g&1))*16 + 8 c0
    v_lshl_add_u32 %7, %4, 2, %5
    v_lshlrev_b32 %7, 8, %7
    v_lshrrev_b32 v212, 1, %6
    v_lshlrev_b32 v212, 3, v212
    v_lshl_add_u32 v212, %5, 1, v212
    v_and_b32 v213, 1, %4
    v_add_u32 v212, v212, v213
    v_lshl_add_u32 %7, v212, 4, %7
    v_and_b32 v212, 1, %6
    v_lshl_add_u32 %7, v212, 3, %7
    v_add_u32 v212, 0x14000, %7
    v_xor_b32 v213, 16, v212
    v_xor_b32 v214, 32, v212
    v_xor_b32 v215, 48, v212
    v_xor_b32 v216, 64, v212
    v_xor_b32 v217, 0x50, v212
    v_xor_b32 v218, 0x60, v212
    v_xor_b32 v219, 0x70, v212
    ; ---- OA16 = (row0+r16)*256 + 16 g
    v_add_u32 %7, s40, %3
    v_lshlrev_b32 %7, 8, %7
    v_lshl_add_u32 v220, %4, 4, %7
"""
    A(sub(addr16, 240))
    A("    s_waitcnt vmcnt(8)")
    TP16 = int(os.environ.get("TP16", "0"))
    sy16 = []
    if PH and TP16 == 2:
        A("    s_setprio 2")
        sy16 = [dict(at=("pv", 0, 0), text="s_setprio 2", fence=True, reads=R(S0_16, 20) + R(S1_16, 20), nostamp=True)]
        prio16 = {"sm0": 0, "epi": 0}
    P16 = tile(False, sy16, TP16, prio=prio16)
    seq16 = finish(P16, NV16, int(os.environ.get('X16', '3')))
    for i in seq16: A("    " + i.text)
    A("L_fin:")
    if STAMP:
        stampn[0] = 11
        A(stamp())
        A("    s_waitcnt vmcnt(0)")
        A("    s_memrealtime s[90:91]")
        A("    s_memtime s[92:93]")
        A("    s_waitcnt lgkmcnt(0)")
        if os.environ.get("DBG"):
            sl = [1, 2, 3, 4, 5, 6, 11, 14]
            A("    s_cmp_lg_u32 s2, %d" % int(os.environ["DBG"]))
            A("    s_cbranch_scc1 L_end")
            A("    s_and_b32 s52, s32, 3")
            A("    s_cmp_lg_u32 s52, 0")
            A("    s_cbranch_scc1 L_end")
            A("    s_mov_b32 s48, s46")
            A("    s_and_b32 s49, s47, 0xffff")
            A("    s_mov_b32 s50, 256")
            A("    s_mov_b32 s51, 0x00020000")
            A("    s_lshl_b32 s52, s32, 3")
            A("    s_mov_b64 exec, 1")
            A("    v_mov_b32 v1, 0")
            for j, k in enumerate(sl):
                A("    s_sub_u32 s53, s%d, s64" % (64 + 2 * k))
                A("    v_mov_b32 v2, s53")
                A("    buffer_store_dword v2, v1, s[48:51], s52 offen offset:%d" % (4 * j))
            A("    s_branch L_end")
        A("    s_mov_b32 s48, s46")
        A("    s_and_b32 s49, s47, 0xffff")
        A("    s_mov_b32 s50, 0x1000000")
        A("    s_mov_b32 s51, 0x00020000")
        A("    s_lshl_b32 s52, s2, 3")
        A("    s_add_u32 s52, s52, s32")
        A("    s_mul_i32 s52, s52, 64")
        A("    s_mov_b64 exec, 1")
        A("    v_mov_b32 v1, 0")
        for k in range(15):
            A("    v_mov_b32 v2, s%d" % (64 + 2 * k))
            A("    buffer_store_dword v2, v1, s[48:51], s52 offen offset:%d" % (4 * k))
    A("L_end:")
    A("    s_endpgm")
    A('.section .rodata,"a"')
    A(".p2align 6")
    A(".amdhsa_kernel standalone__gqa_softmax__near_ridge_kernel")
    A("  .amdhsa_next_free_vgpr 256")
    A("  .amdhsa_next_free_sgpr 100")
    A("  .amdhsa_accum_offset 256")
    A("  .amdhsa_group_segment_fixed_size 0")
    A("  .amdhsa_kernarg_size 48")
    A("  .amdhsa_user_sgpr_count 2")
    A("  .amdhsa_user_sgpr_kernarg_segment_ptr 1")
    A("  .amdhsa_system_sgpr_workgroup_id_x 1")
    A(".end_amdhsa_kernel")
    open(OUT, "w").write("\n".join(L) + "\n")
    def stat(seq):
        from collections import Counter
        return Counter(i.kind for i in seq)
    print("T16", stat(seq16)); print("T32", stat(seq32))

main()
```

```python
import struct, sys, math

import os
OUT = os.environ.get("OUT", "standalone__gqa_softmax__near_ridge.s")

def _fl(e, d):
    v = os.environ.get(e, d)
    return (" " + v) if v and v != "none" else ""
STF = _fl("STF", "sc1"); QF = _fl("QF", "nt"); KVF = _fl("KVF", "nt")
def f32hex(x):
    return "0x%08x" % struct.unpack("<I", struct.pack("<f", x))[0]

def vr(a, n):
    return "v%d" % a if n == 1 else "v[%d:%d]" % (a, a + n - 1)

class Ins:
    __slots__ = ("text", "kind", "reads", "writes", "srcc", "q", "units", "preds", "pos", "idx", "raw")
    def __init__(self, text, kind, reads=(), writes=(), srcc=(), q="V", units=1):
        self.text = text; self.kind = kind
        self.reads = list(reads); self.writes = list(writes); self.srcc = list(srcc)
        self.q = q; self.units = units; self.preds = []; self.pos = None; self.raw = []

def R(a, n=1):
    return list(range(a, a + n))

MF = ("mfma32", "mfma16")
def mf_lat(kind):
    return 12 if kind == "mfma32" else 8

class Prog:
    def __init__(self):
        self.ins = []
    def add(self, i):
        self.ins.append(i); return i
    def valu(self, text, reads, writes, q="V"):
        return self.add(Ins(text, "valu", reads, writes, q=q))
    def trans(self, text, reads, writes, q="V"):
        return self.add(Ins(text, "trans", reads, writes, q=q, units=2))
    def perm(self, text, regs, q="V"):
        return self.add(Ins(text, "perm", regs, regs, q=q))
    def mfma(self, big, d, a, b, first):
        n = 16 if big else 4
        name = "v_mfma_f32_32x32x16_bf16" if big else "v_mfma_f32_16x16x32_bf16"
        c = "0" if first else vr(d, n)
        reads = R(a, 4) + R(b, 4) + ([] if first else R(d, n))
        return self.add(Ins("%s %s, %s, %s, %s" % (name, vr(d, n), vr(a, 4), vr(b, 4), c),
                            "mfma32" if big else "mfma16", reads, R(d, n),
                            srcc=([] if first else R(d, n)), q="M"))
    def dsr128(self, d, addr, off, tok):
        return self.add(Ins("ds_read_b128 %s, v%d offset:%d" % (vr(d, 4), addr, off), "dsr",
                            [addr, tok], R(d, 4), q="M"))
    def dstr(self, d, addr, off, tok):
        return self.add(Ins("ds_read_b64_tr_b16 %s, v%d offset:%d" % (vr(d, 2), addr, off), "dsr",
                            [addr, tok], R(d, 2), q="M"))
    def sync(self, text, tok):
        return self.add(Ins(text, "sync", [], [tok], q="M"))
    def store4(self, d, addr, off):
        return self.add(Ins("buffer_store_dwordx4 %s, v%d, s[24:27], s30 offen offset:%d%s" % (vr(d, 4), addr, off, STF),
                            "store", R(d, 4) + [addr], [], q="V"))

    def build_dag(self):
        lastw = {}; readers = {}
        for k, i in enumerate(self.ins):
            i.idx = k
            ps = set()
            for r in i.reads:
                if r in lastw:
                    ps.add(lastw[r]); i.raw.append(lastw[r])
            for w in i.writes:
                if w in lastw: ps.add(lastw[w])
                for rd in readers.get(w, ()): ps.add(rd)
            ps.discard(i)
            i.preds = list(ps)
            for r in i.reads:
                readers.setdefault(r, []).append(i)
            for w in i.writes:
                lastw[w] = i; readers[w] = []

    def schedule(self, nv, order=None):
        self.build_dag()
        M = [i for i in self.ins if i.q == "M"]
        V = [i for i in self.ins if i.q == "V"]
        out = []
        def dag_ready(i):
            return all(p.pos is not None for p in i.preds)
        def lat_ready(i):
            for p in i.raw:
                if p.kind in MF and i.kind not in MF:
                    if len(out) - p.pos - 1 < mf_lat(p.kind) + 2: return False
            return True
        def emit(i):
            i.pos = len(out); out.append(i)
        mi = vi = 0
        while mi < len(M) or vi < len(V):
            prog = False
            while mi < len(M) and dag_ready(M[mi]):
                i = M[mi]; mi += 1; emit(i); prog = True
                if i.kind in MF: break
            budget = nv
            while vi < len(V) and budget > 0 and dag_ready(V[vi]):
                m_ok = mi < len(M) and dag_ready(M[mi])
                if m_ok and not lat_ready(V[vi]): break
                i = V[vi]; vi += 1; emit(i); prog = True
                budget -= i.units
            assert prog, "scheduler stuck"
        return out

def insert_waits(seq, extra=0):
    out = []; pend = []
    for i in seq:
        touched = set(i.reads) | set(i.writes)
        need = -1
        for k, regs in enumerate(pend):
            if regs & touched: need = k
        if need >= 0:
            cov = 0; k = need + 1
            while k < len(pend) and cov + len(pend[k]) <= 4 * extra:
                cov += len(pend[k]); k += 1
            need = k - 1
            left = len(pend) - (need + 1)
            out.append(Ins("s_waitcnt lgkmcnt(%d)" % min(left, 15), "wait"))
            pend = pend[need + 1:]
        out.append(i)
        if i.kind == "syncd":
            pend = []
        if i.kind == "dsr":
            pend.append(set(i.writes))
    return out

def insert_nops(seq):
    out = []; pos = 0
    lastw = {}
    lastc = {}
    lastst = {}
    for i in seq:
        need = 0
        def req(p, ws):
            nonlocal need
            d = pos - p - 1
            if ws - d > need: need = ws - d
        ismf = i.kind in MF
        isv = i.kind in ("valu", "trans", "perm")
        for r in i.reads:
            if not isinstance(r, int) or r not in lastw: continue
            p, pi = lastw[r]
            if pi.kind in ("valu", "trans", "perm"):
                if ismf: req(p, 2)
                elif i.kind == "perm": req(p, 2)
                elif pi.kind == "trans" and i.kind == "valu": req(p, 1)
                elif pi.kind == "trans": req(p, 1)
            elif pi.kind in MF:
                if ismf:
                    if r in i.srcc and pi.kind == i.kind and pi.writes == i.srcc:
                        pass
                    elif r in i.srcc:
                        req(p, 10 if pi.kind == "mfma32" else 6)
                    else:
                        req(p, mf_lat(pi.kind))
                else:
                    req(p, mf_lat(pi.kind))
        for w in i.writes:
            if not isinstance(w, int): continue
            if w in lastw:
                p, pi = lastw[w]
                if pi.kind in MF:
                    if ismf:
                        if not (pi.kind == i.kind and pi.writes == i.writes):
                            req(p, 10 if pi.kind == "mfma32" else 6)
                    else:
                        req(p, mf_lat(pi.kind))
            if w in lastc and not ismf:
                p, pi = lastc[w]
                req(p, 7 if pi.kind == "mfma32" else 3)
            if w in lastst:
                req(lastst[w], 2)
        if need > 0:
            while need > 0:
                n = min(need, 16)
                out.append(Ins("s_nop %d" % (n - 1), "nop")); pos += n; need -= n
        out.append(i)
        for w in i.writes:
            if isinstance(w, int): lastw[w] = (pos, i)
        for c in i.srcc: lastc[c] = (pos, i)
        if i.kind == "store":
            for r in i.reads: lastst[r] = pos
        pos += 1
    return out

KA32 = 8; VA32 = 16; OA32 = 20
M0, M1, NEG, ALPHA, LA, LB, T0, RCP = 22, 23, 24, 25, 26, 27, 3, 25
VD = 1; Q16A = 2; SEL = 26
ONES = int(os.environ.get("ONES", "1"))
FR = [32, 36, 40, 44, 48, 52]
QF32 = 56; S0 = 88; S1 = 168
O32 = [56, 72, 136, 152]
QF16L = [248, 252, 4, 28]; S0_16 = 56; S1_16 = 136; O16 = 176
KA16 = 208; VA16 = 212; OA16 = 220
FR16 = [32, 36, 40, 44, 48, 52, 224, 228, 232, 236]
OA32B = 21
SC = "s28"; SNC = "s29"

lbl = [0]
import os
STAMP = int(os.environ.get("STAMP", "0"))
stampn = [0]
def stamp():
    if not STAMP: return ""
    k = stampn[0]; stampn[0] += 1
    return "\n    s_memtime s[%d:%d]\n    s_waitcnt lgkmcnt(0)" % (64 + 2 * k, 65 + 2 * k)
def sync_text(vm, cond, post=""):
    body = "s_waitcnt vmcnt(%d)\n    s_barrier%s" % (vm, post)
    if not cond:
        return body + stamp()
    lbl[0] += 1
    return ("s_cmp_eq_u32 s31, 0\n    s_cbranch_scc1 L_skip%d\n    %s\nL_skip%d:" % (lbl[0], body, lbl[0])) + stamp()

def tile(big, syncs=(), twopass=False, vst=(), prio=None):
    P = Prog()
    if big:
        NKT, NKS, SW = 5, 8, 16
        KA, VA, OA = KA32, VA32, OA32
        QFL, SS = [QF32 + 4 * i for i in range(8)], (S0, S1)
        NDT, NKK, OW = 4, 10, 16
        O = O32; fr = FR
        KT_OFF = 8192; KK_OFF, T_OFF = 4096, 2048
        AHEAD = 4
        SELT, LS = 8, 12
    else:
        NKT, NKS, SW = 10, 4, 4
        KA, VA, OA = KA16, VA16, OA16
        QFL, SS = QF16L, (S0_16, S1_16)
        NDT, NKK, OW = 8, 5, 4
        O = [O16 + 4 * i for i in range(8)]; fr = FR16
        KT_OFF = 4096; KK_OFF, T_OFF = 8192, 4096
        AHEAD = 8
        SELT, LS = 208, 240
    NS = NKT * SW
    frc = [0]
    def nextfr():
        f = fr[frc[0] % len(fr)]; frc[0] += 1; return f

    mops = []
    def chk(kind, h, cnt):
        for sy in syncs:
            if sy["at"] == (kind, h, cnt):
                mops.append(("sync", sy))
    def qk(h):
        n = 0
        for kt in range(NKT):
            for ks in range(NKS):
                chk("qk", h, n)
                if h == 1 and n == 0:
                    mops.append(("rebase", KA, NKS))
                mops.append(("qk", h, kt, ks)); n += 1
    def pv(h):
        n = 0
        for kk in range(NKK):
            for dt in range(NDT):
                chk("pv", h, n)
                if h == 1 and n == 0:
                    mops.append(("rebase", VA, NDT))
                mops.append(("pv", h, kk, dt)); n += 1
                if ONES and dt == 0:
                    mops.append(("ls", h, kk))

    if twopass == 3:
        twopass = 0
        qk(0); mops.append(("v", "max0")); qk(1); mops.append(("v", "sm0")); mops.append(("v", "max1"))
        mops.append(("v", "sm1")); pv(0); mops.append(("v", "resc")); pv(1); mops.append(("v", "epi"))
    elif twopass == 2:
        qk(0); mops.append(("v", "max0")); qk(1); mops.append(("v", "max1")); mops.append(("v", "sm0"))
        mops.append(("v", "sm1"))
        pv(0); pv(1); mops.append(("v", "epi"))
    elif twopass:
        qk(0); mops.append(("v", "max0")); qk(1); mops.append(("v", "max1")); mops.append(("v", "sm0"))
        pv(0); mops.append(("v", "sm1")); pv(1); mops.append(("v", "epi"))
    else:
        qk(0); mops.append(("v", "max0")); qk(1); mops.append(("v", "sm0")); mops.append(("v", "max1"))
        pv(0); mops.append(("v", "sm1")); mops.append(("v", "resc")); pv(1); mops.append(("v", "epi"))

    mm_idx = [k for k, o in enumerate(mops) if o[0] in ("qk", "pv")]
    fragof = {}
    issued = set()
    def issue_read(k):
        o = mops[k]
        f = nextfr(); fragof[k] = f
        if o[0] == "qk":
            _, h, kt, ks = o
            P.dsr128(f, KA + ks, kt * KT_OFF, "K%d" % h)
        else:
            _, h, kk, dt = o
            P.dstr(f, VA + dt, kk * KK_OFF, "V%d" % h)
            P.dstr(f + 2, VA + dt, kk * KK_OFF + T_OFF, "V%d" % h)
        issued.add(k)
    done_ctl = set()
    def do_ctl(k):
        o = mops[k]
        if k in done_ctl: return
        done_ctl.add(k)
        if o[0] == "sync":
            sy = o[1]
            si = P.sync(sy["text"] + ("" if sy.get("nostamp") else stamp()), sy.get("tok", "none"))
            si.writes = si.writes + list(sy.get("writes", ()))
            si.reads = si.reads + list(sy.get("reads", ()))
            if sy.get("kind"): si.kind = sy["kind"]
        elif o[0] == "rebase":
            for j in range(o[2]):
                P.valu("v_add_u32 v%d, 0xa000, v%d" % (o[1] + j, o[1] + j), [o[1] + j], [o[1] + j], q="M")

    def reduce_x(x, op):
        perms = ["v_permlane32_swap_b32"] if big else ["v_permlane16_swap_b32", "v_permlane32_swap_b32"]
        for pm in perms:
            P.valu("v_mov_b32 v%d, v%d" % (T0, x), [x], [T0])
            P.perm("%s v%d, v%d" % (pm, x, T0), [x, T0])
            P.valu("%s v%d, v%d, v%d" % (op, x, x, T0), [x, T0], [x])

    def vwork(name):
        if name in ("max0", "max1"):
            h = int(name[3]); s = SS[h]; m = M0 if h == 0 else M1
            if h == 0:
                P.valu("v_max_f32 v%d, v%d, v%d" % (m, s, s + 1), [s, s + 1], [m]); st = 2
            else:
                P.valu("v_max3_f32 v%d, v%d, v%d, v%d" % (m, M0, s, s + 1), [M0, s, s + 1], [m]); st = 2
            for j in range(st, NS, 2):
                P.valu("v_max3_f32 v%d, v%d, v%d, v%d" % (m, m, s + j, s + j + 1), [m, s + j, s + j + 1], [m])
            if not (twopass and h == 0):
                reduce_x(m, "v_max_f32")
            if ONES and h == 1:
                for j in range(4):
                    if big: P.valu("v_mov_b32 v%d, v%d" % (SELT + j, SEL), [SEL], [SELT + j])
                    else: P.valu("v_mov_b32 v%d, 0x3f803f80" % (SELT + j), [], [SELT + j])
        elif name in ("sm0", "sm1"):
            h = int(name[2]); s = SS[h]; m = M0 if h == 0 else M1
            if twopass: m = M1
            if not (twopass and h == 1):
                P.valu("v_mul_f32 v%d, %s, v%d" % (NEG, SNC, m), [m], [NEG])
            if h == 1 and not twopass:
                P.valu("v_fma_f32 v%d, v%d, %s, v%d" % (ALPHA, M0, SC, NEG), [M0, NEG], [ALPHA])
                P.trans("v_exp_f32 v%d, v%d" % (ALPHA, ALPHA), [ALPHA], [ALPHA])
                if not ONES:
                    P.valu("v_add_f32 v%d, v%d, v%d" % (LA, LA, LB), [LA, LB], [LA])
                    P.valu("v_mul_f32 v%d, v%d, v%d" % (LA, LA, ALPHA), [LA, ALPHA], [LA])
            for g in range(NS // 8):
                b = s + 8 * g
                for j in range(8):
                    P.valu("v_fma_f32 v%d, v%d, %s, v%d" % (b + j, b + j, SC, NEG), [b + j, NEG], [b + j])
                for j in range(8):
                    P.trans("v_exp_f32 v%d, v%d" % (b + j, b + j), [b + j], [b + j])
                for j in range(8):
                    if ONES: break
                    acc = LA if (j & 1) == 0 else LB
                    first = (h == 0 and g == 0 and j < 2) or (h == 1 and g == 0 and j == 1 and not twopass)
                    if first:
                        P.valu("v_mov_b32 v%d, v%d" % (acc, b + j), [b + j], [acc])
                    else:
                        P.valu("v_add_f32 v%d, v%d, v%d" % (acc, acc, b + j), [acc, b + j], [acc])
                for j in range(4):
                    d = s + 4 * g + j
                    P.valu("v_cvt_pk_bf16_f32 v%d, v%d, v%d" % (d, b + 2 * j, b + 2 * j + 1),
                           [b + 2 * j, b + 2 * j + 1], [d])
        elif name == "resc":
            if ONES:
                P.valu("v_mul_f32 v%d, v%d, v%d" % (LS, LS, ALPHA), [LS, ALPHA], [LS])
            for o in O:
                for j in range(OW):
                    P.valu("v_mul_f32 v%d, v%d, v%d" % (o + j, o + j, ALPHA), [o + j, ALPHA], [o + j])
        elif name == "epi":
            if ONES:
                P.trans("v_rcp_f32 v%d, v%d" % (RCP, LS), [LS], [RCP])
            else:
                P.valu("v_add_f32 v%d, v%d, v%d" % (LA, LA, LB), [LA, LB], [LA])
                reduce_x(LA, "v_add_f32")
                P.trans("v_rcp_f32 v%d, v%d" % (RCP, LA), [LA], [RCP])
            def cv(o, n):
                for j in range(2 * n):
                    P.valu("v_mul_f32 v%d, v%d, v%d" % (o + j, o + j, RCP), [o + j, RCP], [o + j])
                for j in range(n):
                    P.valu("v_cvt_pk_bf16_f32 v%d, v%d, v%d" % (o + j, o + 2 * j, o + 2 * j + 1),
                           [o + 2 * j, o + 2 * j + 1], [o + j])
            if big:
                for e in range(2):
                    oa, ob = O[2 * e], O[2 * e + 1]
                    cv(oa, 8); cv(ob, 8)
                    for o in (oa, ob):
                        for j in range(4):
                            P.perm("v_permlane32_swap_b32 v%d, v%d" % (o + j, o + 4 + j), [o + j, o + 4 + j])
                    for j in range(8):
                        P.perm("v_permlane16_swap_b32 v%d, v%d" % (oa + j, ob + j), [oa + j, ob + j])
                    P.store4(oa, OA, 64 * e); P.store4(ob, OA32B, 64 * e)
                    P.store4(oa + 4, OA, 128 + 64 * e); P.store4(ob + 4, OA32B, 128 + 64 * e)
            else:
                for e in range(2):
                    ws = []
                    for u in (2 * e, 2 * e + 1):
                        o = O[2 * u]
                        cv(o, 4)
                        P.perm("v_permlane16_swap_b32 v%d, v%d" % (o, o + 2), [o, o + 2])
                        P.perm("v_permlane16_swap_b32 v%d, v%d" % (o + 1, o + 3), [o + 1, o + 3])
                        ws.append(o)
                    for j in range(4):
                        P.perm("v_permlane32_swap_b32 v%d, v%d" % (ws[0] + j, ws[1] + j), [ws[0] + j, ws[1] + j])
                    P.store4(ws[0], OA, 64 * e); P.store4(ws[1], OA, 128 + 64 * e)

    nread = 0
    for pos_k, o in enumerate(mops):
        if o[0] == "v":
            if prio and o[1] in prio:
                P.add(Ins("s_setprio %d" % prio[o[1]], "sync", ([O[-1]] if o[1] == "epi" else []), [], q="V"))
            vwork(o[1])
            if STAMP and vst and o[1] in vst:
                P.add(Ins("s_nop 0" + stamp(), "syncd", [], [], q="V"))
            continue
        if o[0] in ("sync", "rebase"):
            do_ctl(pos_k); continue
        if o[0] == "ls":
            _, h, kk = o
            P.mfma(False, LS, SELT, SS[h] + 4 * kk, h == 0 and kk == 0)
            continue
        j = mm_idx.index(pos_k)
        while nread < len(mm_idx) and nread <= j + AHEAD:
            k = mm_idx[nread]
            if any(mops[c][0] == "sync" and mops[c][1].get("fence") and c not in done_ctl for c in range(pos_k, k)):
                break
            for c in range(pos_k, k):
                if mops[c][0] in ("sync", "rebase"): do_ctl(c)
            issue_read(k); nread += 1
        f = fragof[pos_k]
        if o[0] == "qk":
            _, h, kt, ks = o
            P.mfma(big, SS[h] + SW * kt, f, QFL[ks], ks == 0)
        else:
            _, h, kk, dt = o
            P.mfma(big, O[dt], f, SS[h] + 4 * kk, h == 0 and kk == 0)
    return P

def finish(P, nv, extra=0):
    seq = P.schedule(nv)
    seq = insert_waits(seq, extra)
    seq = insert_nops(seq)
    return seq

def main():
    NV32 = int(os.environ.get("NV32", "8"))
    NV16 = int(os.environ.get("NV16", "4"))
    c = math.log2(math.e) / math.sqrt(128.0)
    L = []
    A = L.append
    hdr = open("standalone__gqa_softmax__near_ridge.s.ref").read().split("\n")
    for line in hdr:
        if line.startswith("; @launch"):
            A("; @launch grid=(256,1,1) block=(512,1,1) lds=163840")
        elif line.startswith(";"):
            A(line)
        else:
            break
    A('.amdgcn_target "amdgcn-amd-amdhsa--gfx950"')
    A(".text")
    A(".globl standalone__gqa_softmax__near_ridge_kernel")
    A(".p2align 8")
    A(".type standalone__gqa_softmax__near_ridge_kernel,@function")
    A("standalone__gqa_softmax__near_ridge_kernel:")
    def sub(txt, b):
        for k in range(1, 8):
            txt = txt.replace("%%%d" % k, "v%d" % (b + k))
        return txt
    lanedec = """
    v_and_b32 %1, 31, v0                   ; r32
    v_lshrrev_b32 %2, 5, v0                ; h
    v_and_b32 %3, 15, v0                   ; r16
    v_lshrrev_b32 %4, 4, v0                ; g (0..3)
    v_lshrrev_b32 %5, 2, v0
    v_and_b32 %5, 3, %5                    ; r4
    v_and_b32 %6, 3, v0                    ; c
"""
    KD = 40; Q32A = 41
    pro = """
    s_cmp_ge_u32 s2, 256
    s_cbranch_scc1 L_end
    s_load_dwordx4 s[4:7], s[0:1], 0
    s_load_dwordx4 s[8:11], s[0:1], 16
    s_load_dwordx2 s[46:47], s[0:1], """ + ("32" if os.environ.get("DBG") else "40") + """
    v_lshrrev_b32 v1, 6, v0
    v_and_b32 v0, 63, v0
    s_nop 0
    v_readfirstlane_b32 s32, v1            ; wave id
    ; workgroup -> (group, head)
    s_and_b32 s33, s2, 7
    s_lshr_b32 s34, s2, 3
    s_lshl_b32 s33, s33, 3
    s_lshr_b32 s35, s34, 2
    s_add_u32 s33, s33, s35                ; kv group
    s_and_b32 s34, s34, 3
    s_lshl_b32 s35, s33, 2
    s_add_u32 s35, s35, s34                ; q head
    s_mul_i32 s30, s35, 81920              ; q/out head byte offset
    s_mul_i32 s36, s33, 81920              ; kv byte offset
    s_mov_b32 s28, """ + f32hex(c) + """
    s_mov_b32 s29, """ + f32hex(-c) + """
    s_and_b32 s37, s32, 3                  ; simd slot
    s_mul_i32 s38, s37, 80                 ; row base
    s_lshr_b32 s31, s32, 2
    s_xor_b32 s31, s31, 1                  ; 1 for B waves (w<4): T32 then T16
    ; T32 row0: B -> 80s ; A -> 80s+32
    s_lshl_b32 s39, s31, 5
    s_sub_u32 s39, 32, s39
    s_add_u32 s39, s39, s38                ; T32 row0
    s_add_u32 s40, s38, 64                 ; T16 row0
""" + lanedec + """
    ; ---- DMA voffsets:  KD=v40  VD=v1
    s_lshl_b32 s41, s37, 2
    v_add_u32 %7, s41, %4                  ; 4(w&3)+(i>>4)
    v_xor_b32 %7, %7, %3
    v_lshlrev_b32 %7, 4, %7
    v_lshl_or_b32 v40, %4, 8, %7
    s_and_b32 s41, s32, 1
    v_lshlrev_b32 %7, 1, %4
    v_or_b32 %7, s41, %7
    v_xor_b32 %7, %7, %3
    v_lshlrev_b32 %7, 4, %7
    v_lshl_or_b32 v1, %4, 8, %7
    s_waitcnt lgkmcnt(0)
    s_mov_b32 s12, s4
    s_and_b32 s13, s5, 0xffff
    s_mov_b32 s14, 20971520
    s_mov_b32 s15, 0x00020000
    s_mov_b32 s16, s6
    s_and_b32 s17, s7, 0xffff
    s_mov_b32 s18, 5242880
    s_mov_b32 s19, 0x00020000
    s_mov_b32 s20, s8
    s_and_b32 s21, s9, 0xffff
    s_mov_b32 s22, 5242880
    s_mov_b32 s23, 0x00020000
    s_mov_b32 s24, s10
    s_and_b32 s25, s11, 0xffff
    s_mov_b32 s26, 20971520
    s_mov_b32 s27, 0x00020000
    s_lshl_b32 s42, s32, 10                ; lds offset = 1024 w
    s_add_u32 s43, s36, s42                ; kv global offset
    s_lshl_b32 s56, s37, 10
    s_add_u32 s57, s36, s56
    s_xor_b32 s58, s31, 1
    s_lshl_b32 s58, s58, 15
    s_add_u32 s58, s58, s56
    s_lshl_b32 s54, s39, 8
    s_add_u32 s54, s54, s30                ; q32 global offset
    s_lshl_b32 s55, s40, 8
    s_add_u32 s55, s55, s30                ; q16 global offset
"""
    A(sub(pro, 32))
    if STAMP:
        A("".join("    s_mov_b64 s[%d:%d], 0\n" % (64 + 2 * k, 65 + 2 * k) for k in range(12)) + "    s_memrealtime s[88:89]\n" + stamp())
    def dma(ldsoff, sbase, goff, vreg, srd, fl):
        return ("s_add_u32 s44, s42, %d\n    s_mov_b32 m0, s44\n    s_add_u32 s45, %s, %d\n"
                "    buffer_load_dwordx4 v%d, s[%d:%d], s45 offen%s lds\n    " % (ldsoff, sbase, goff, vreg, srd, srd + 3, fl))
    def dma4(ldsoff, sbase, goff, vreg, srd, fl):
        return ("s_add_u32 s44, s56, %d\n    s_mov_b32 m0, s44\n    s_add_u32 s45, %s, %d\n"
                "    buffer_load_dwordx4 v%d, s[%d:%d], s45 offen%s lds\n    " % (ldsoff, sbase, goff, vreg, srd, srd + 3, fl))
    def kdma0():
        return "".join(dma(8192 * n, "s43", 8192 * n, KD, 16, KVF) for n in range(5))
    def kdma1():
        return "".join(dma4(40960 + 4096 * n, "s57", 40960 + 4096 * n, KD, 16, KVF) for n in range(10))
    def q32dma():
        return "".join(dma4(81920 + 4096 * n, "s54", 1024 * n, KD, 12, QF).replace("s56", "s58") for n in range(8))
    def q16dma():
        return "".join(dma4(81920 + 65536 + 4096 * m, "s55", 1024 * m, KD, 12, QF) for m in range(4))
    def vdma(ns):
        return "".join(dma4(81920 + 4096 * n, "s57", 4096 * n, VD, 20, KVF) for n in ns)
    A("    " + kdma0())
    if int(os.environ.get("BAR0", "1")): A("    s_barrier")
    A("    s_cmp_eq_u32 s31, 0")
    A("    s_cbranch_scc1 L_noq")
    A("    " + q32dma())
    A("    s_branch L_q2")
    A("L_noq:")
    A("    " + kdma1())
    A("L_q2:")
    if STAMP: A(stamp())
    addr32 = """
    ; ---- KA32
    v_xor_b32 %7, %2, %3
    v_lshlrev_b32 %7, 4, %7
    v_lshl_or_b32 v8, %1, 8, %7
    v_xor_b32 v9, 32, v8
    v_xor_b32 v10, 64, v8
    v_xor_b32 v11, 0x60, v8
    v_xor_b32 v12, 0x80, v8
    v_xor_b32 v13, 0xa0, v8
    v_xor_b32 v14, 0xc0, v8
    v_xor_b32 v15, 0xe0, v8
    ; ---- VA32: 81920 + (4h+r4)*256 + (8(c&1) + 2 r4 + (g'^h))*16 + 8(c>>1)
    v_lshl_add_u32 %7, %2, 2, %5           ; 4h+r4
    v_lshlrev_b32 %7, 8, %7
    v_and_b32 v16, 1, %6
    v_lshlrev_b32 v16, 3, v16
    v_lshl_add_u32 v16, %5, 1, v16
    v_and_b32 v17, 1, %4
    v_xor_b32 v17, v17, %2
    v_add_u32 v16, v16, v17
    v_lshl_add_u32 %7, v16, 4, %7
    v_lshrrev_b32 v16, 1, %6
    v_lshl_add_u32 %7, v16, 3, %7
    v_add_u32 v16, 0x14000, %7
    v_xor_b32 v17, 32, v16
    v_xor_b32 v18, 64, v16
    v_xor_b32 v19, 0x60, v16
    v_add_u32 %7, s39, %3
    v_lshlrev_b32 %7, 8, %7
    v_and_b32 v20, 1, %4
    v_lshl_add_u32 v20, v20, 1, %2
    v_lshl_add_u32 v20, v20, 4, %7
    v_add_u32 v21, 0x1000, v20
    ; ---- SEL (v26)
    v_xor_b32 %7, %5, %4
    v_and_b32 %7, 1, %7
    v_or_b32 %7, %7, %6
    v_mov_b32 v42, 0x3f803f80
    v_cmp_eq_u32 vcc, 0, %7
    v_cndmask_b32 v26, 0, v42, vcc
    s_lshl_b32 s41, s37, 2
    s_add_u32 s44, s58, 0x14000
    v_add_u32 v42, s41, %6                 ; x = 4(w&3) + (r&3)
    v_xor_b32 v41, v42, %2
    v_lshlrev_b32 v41, 4, v41
    v_lshl_add_u32 v41, %6, 8, v41
    v_lshrrev_b32 %7, 2, %1
    v_lshl_add_u32 v41, %7, 12, v41
    v_add_u32 v41, s44, v41
    v_add_u32 %7, s40, %3
    v_lshlrev_b32 %7, 8, %7
    v_lshl_add_u32 v2, %4, 4, %7
"""
    A(sub(addr32, 32))
    def q32read():
        t = ""
        for ks in range(8):
            d = QF32 + 4 * ks
            t += "v_xor_b32 v%d, 0x%x, v41\n    " % (d, 32 * ks)
        for ks in range(8):
            d = QF32 + 4 * ks
            t += "ds_read_b128 v[%d:%d], v%d\n    " % (d, d + 3, d)
        return t + "s_waitcnt lgkmcnt(0)\n    "
    def q16read():
        t = ""
        for ks in range(4):
            d = QF16L[ks]
            t += "v_xor_b32 v%d, 0x%x, v2\n    " % (d, 64 * ks)
        for ks in range(4):
            d = QF16L[ks]
            t += "ds_read_b128 v[%d:%d], v%d\n    " % (d, d + 3, d)
        return t + "s_waitcnt lgkmcnt(0)\n    "
    def pos(e, d):
        v = os.environ.get(e, d).split(",")
        return (v[0], int(v[1]), int(v[2]))
    X32 = int(os.environ.get('X32', '1'))
    A("    s_cmp_eq_u32 s31, 1")
    A("    s_cbranch_scc1 L_B")
    A("    s_waitcnt vmcnt(10)")
    A("    s_barrier")
    if STAMP: A(stamp())
    A("    " + q32dma())
    A("    s_waitcnt vmcnt(8)")
    A("    s_barrier")
    if STAMP: A(stamp())
    A("    " + vdma(range(8)) + vdma(range(16, 20)))
    A("    s_waitcnt vmcnt(12)")
    if STAMP: A(stamp())
    A("    " + q32read() + vdma(range(8, 16)))
    if int(os.environ.get("PRIOA", "0")): A("    s_setprio %d" % int(os.environ.get("PRIOA", "0")))
    PH = int(os.environ.get("PH", "0"))
    syA = [dict(at=pos("A2", "qk,1,30"), text="s_waitcnt vmcnt(0)\n    s_barrier")]
    prioA = prioB = prio16 = None
    if PH:
        A("    s_setprio %d" % int(os.environ.get("PQA", "2")))
        syA.append(dict(at=("pv", 0, 0), text="s_setprio 2", fence=True, reads=R(S0, 40) + R(S1, 40), nostamp=True))
        prioA = {"sm0": 0, "epi": 0}
        prioB = {"sm0": 0, "epi": 0} if os.environ.get("TPB", "2") != "3" else {"max1": 0, "epi": 0}
    PA = tile(True, syA, twopass=int(os.environ.get("TPA", "1")), vst=os.environ.get("VSTA", "").split(","), prio=prioA)
    seqA = finish(PA, NV32, X32)
    for i in seqA: A("    " + i.text)
    if STAMP: A(stamp())
    A("    s_branch L_fin")
    A("L_B:")
    if PH: A("    s_setprio 2")
    if int(os.environ.get("PRIO", "0")): A("    s_setprio %d" % int(os.environ.get("PRIO", "0")))
    stampn[0] = 2
    A("    s_waitcnt vmcnt(0)")
    if STAMP: A(stamp())
    A("    " + q32read())
    A("    s_barrier")
    if STAMP: A(stamp())
    TPB = int(os.environ.get("TPB", "2"))
    q16 = ""
    for ks in range(4):
        q16 += "buffer_load_dwordx4 v[%d:%d], v2, s[12:15], s30 offen offset:%d%s\n    " % (QF16L[ks], QF16L[ks] + 3, 64 * ks, _fl("Q16F", "none"))
    syB = [dict(at=("qk", 1, 0), text="s_barrier"),
           dict(at=("pv", 0, 0), text=q16 + "s_barrier" + ("\n    s_setprio 2" if PH else ""), fence=(TPB >= 2), reads=(R(S0, 40) + R(S1, 40) if TPB >= 2 else []))]
    P32 = tile(True, syB, twopass=TPB, vst=os.environ.get("VSTB", "").split(","), prio=prioB)
    seq32 = finish(P32, NV32, X32)
    for i in seq32: A("    " + i.text)
    if STAMP: A(stamp())
    if os.environ.get("PRIO16"): A("    s_setprio %d" % int(os.environ.get("PRIO16")))
    addr16 = lanedec + """
    ; ---- KA16 = ((r<<8) | ((g^r)<<4)) ^ (ks<<6)
    v_xor_b32 %7, %4, %3
    v_lshlrev_b32 %7, 4, %7
    v_lshl_or_b32 v208, %3, 8, %7
    v_xor_b32 v209, 64, v208
    v_xor_b32 v210, 0x80, v208
    v_xor_b32 v211, 0xc0, v208
    ; ---- VA16: 81920 + (4g+r4)*256 + (8c1 | 2 r4 | (g&1))*16 + 8 c0
    v_lshl_add_u32 %7, %4, 2, %5
    v_lshlrev_b32 %7, 8, %7
    v_lshrrev_b32 v212, 1, %6
    v_lshlrev_b32 v212, 3, v212
    v_lshl_add_u32 v212, %5, 1, v212
    v_and_b32 v213, 1, %4
    v_add_u32 v212, v212, v213
    v_lshl_add_u32 %7, v212, 4, %7
    v_and_b32 v212, 1, %6
    v_lshl_add_u32 %7, v212, 3, %7
    v_add_u32 v212, 0x14000, %7
    v_xor_b32 v213, 16, v212
    v_xor_b32 v214, 32, v212
    v_xor_b32 v215, 48, v212
    v_xor_b32 v216, 64, v212
    v_xor_b32 v217, 0x50, v212
    v_xor_b32 v218, 0x60, v212
    v_xor_b32 v219, 0x70, v212
    ; ---- OA16 = (row0+r16)*256 + 16 g
    v_add_u32 %7, s40, %3
    v_lshlrev_b32 %7, 8, %7
    v_lshl_add_u32 v220, %4, 4, %7
"""
    A(sub(addr16, 240))
    A("    s_waitcnt vmcnt(8)")
    TP16 = int(os.environ.get("TP16", "0"))
    sy16 = []
    if PH and TP16 == 2:
        A("    s_setprio 2")
        sy16 = [dict(at=("pv", 0, 0), text="s_setprio 2", fence=True, reads=R(S0_16, 20) + R(S1_16, 20), nostamp=True)]
        prio16 = {"sm0": 0, "epi": 0}
    P16 = tile(False, sy16, TP16, prio=prio16)
    seq16 = finish(P16, NV16, int(os.environ.get('X16', '3')))
    for i in seq16: A("    " + i.text)
    A("L_fin:")
    if os.environ.get("DELAY"):
        A("    s_mov_b32 s53, %d" % int(os.environ["DELAY"]))
        A("L_dl:")
        A("    s_nop 15\n    s_nop 15\n    s_nop 15")
        A("    s_sub_u32 s53, s53, 1")
        A("    s_cmp_lg_u32 s53, 0")
        A("    s_cbranch_scc1 L_dl")
    if STAMP:
        stampn[0] = 11
        A(stamp())
        A("    s_waitcnt vmcnt(0)")
        A("    s_memrealtime s[90:91]")
        A("    s_memtime s[92:93]")
        A("    s_waitcnt lgkmcnt(0)")
        if os.environ.get("DBG"):
            sl = [1, 2, 3, 4, 5, 6, 11, 14]
            A("    s_cmp_lg_u32 s2, %d" % int(os.environ["DBG"]))
            A("    s_cbranch_scc1 L_end")
            A("    s_and_b32 s52, s32, 3")
            A("    s_cmp_lg_u32 s52, 0")
            A("    s_cbranch_scc1 L_end")
            A("    s_mov_b32 s48, s46")
            A("    s_and_b32 s49, s47, 0xffff")
            A("    s_mov_b32 s50, 256")
            A("    s_mov_b32 s51, 0x00020000")
            A("    s_lshl_b32 s52, s32, 3")
            A("    s_mov_b64 exec, 1")
            A("    v_mov_b32 v1, 0")
            for j, k in enumerate(sl):
                A("    s_sub_u32 s53, s%d, s64" % (64 + 2 * k))
                A("    v_mov_b32 v2, s53")
                A("    buffer_store_dword v2, v1, s[48:51], s52 offen offset:%d" % (4 * j))
            A("    s_branch L_end")
        A("    s_mov_b32 s48, s46")
        A("    s_and_b32 s49, s47, 0xffff")
        A("    s_mov_b32 s50, 0x1000000")
        A("    s_mov_b32 s51, 0x00020000")
        A("    s_lshl_b32 s52, s2, 3")
        A("    s_add_u32 s52, s52, s32")
        A("    s_mul_i32 s52, s52, 64")
        A("    s_mov_b64 exec, 1")
        A("    v_mov_b32 v1, 0")
        for k in range(15):
            A("    v_mov_b32 v2, s%d" % (64 + 2 * k))
            A("    buffer_store_dword v2, v1, s[48:51], s52 offen offset:%d" % (4 * k))
    A("L_end:")
    A("    s_endpgm")
    A('.section .rodata,"a"')
    A(".p2align 6")
    A(".amdhsa_kernel standalone__gqa_softmax__near_ridge_kernel")
    A("  .amdhsa_next_free_vgpr 256")
    A("  .amdhsa_next_free_sgpr 100")
    A("  .amdhsa_accum_offset 256")
    A("  .amdhsa_group_segment_fixed_size 0")
    A("  .amdhsa_kernarg_size 48")
    A("  .amdhsa_user_sgpr_count 2")
    A("  .amdhsa_user_sgpr_kernarg_segment_ptr 1")
    A("  .amdhsa_system_sgpr_workgroup_id_x 1")
    A(".end_amdhsa_kernel")
    open(OUT, "w").write("\n".join(L) + "\n")
    def stat(seq):
        from collections import Counter
        return Counter(i.kind for i in seq)
    print("T16", stat(seq16)); print("T32", stat(seq32))

main()
```

```python
import struct, sys, math

import os
OUT = os.environ.get("OUT", "standalone__gqa_softmax__near_ridge.s")

def _fl(e, d):
    v = os.environ.get(e, d)
    return (" " + v) if v and v != "none" else ""
STF = _fl("STF", "sc1"); QF = _fl("QF", "nt"); KVF = _fl("KVF", "nt")
def f32hex(x):
    return "0x%08x" % struct.unpack("<I", struct.pack("<f", x))[0]

def vr(a, n):
    return "v%d" % a if n == 1 else "v[%d:%d]" % (a, a + n - 1)

class Ins:
    __slots__ = ("text", "kind", "reads", "writes", "srcc", "q", "units", "preds", "pos", "idx", "raw")
    def __init__(self, text, kind, reads=(), writes=(), srcc=(), q="V", units=1):
        self.text = text; self.kind = kind
        self.reads = list(reads); self.writes = list(writes); self.srcc = list(srcc)
        self.q = q; self.units = units; self.preds = []; self.pos = None; self.raw = []

def R(a, n=1):
    return list(range(a, a + n))

MF = ("mfma32", "mfma16")
def mf_lat(kind):
    return 12 if kind == "mfma32" else 8

class Prog:
    def __init__(self):
        self.ins = []
    def add(self, i):
        self.ins.append(i); return i
    def valu(self, text, reads, writes, q="V"):
        return self.add(Ins(text, "valu", reads, writes, q=q))
    def trans(self, text, reads, writes, q="V"):
        return self.add(Ins(text, "trans", reads, writes, q=q, units=2))
    def perm(self, text, regs, q="V"):
        return self.add(Ins(text, "perm", regs, regs, q=q))
    def mfma(self, big, d, a, b, first):
        n = 16 if big else 4
        name = "v_mfma_f32_32x32x16_bf16" if big else "v_mfma_f32_16x16x32_bf16"
        c = "0" if first else vr(d, n)
        reads = R(a, 4) + R(b, 4) + ([] if first else R(d, n))
        return self.add(Ins("%s %s, %s, %s, %s" % (name, vr(d, n), vr(a, 4), vr(b, 4), c),
                            "mfma32" if big else "mfma16", reads, R(d, n),
                            srcc=([] if first else R(d, n)), q="M"))
    def dsr128(self, d, addr, off, tok):
        return self.add(Ins("ds_read_b128 %s, v%d offset:%d" % (vr(d, 4), addr, off), "dsr",
                            [addr, tok], R(d, 4), q="M"))
    def dstr(self, d, addr, off, tok):
        return self.add(Ins("ds_read_b64_tr_b16 %s, v%d offset:%d" % (vr(d, 2), addr, off), "dsr",
                            [addr, tok], R(d, 2), q="M"))
    def sync(self, text, tok):
        return self.add(Ins(text, "sync", [], [tok], q="M"))
    def store4(self, d, addr, off):
        return self.add(Ins("buffer_store_dwordx4 %s, v%d, s[24:27], s30 offen offset:%d%s" % (vr(d, 4), addr, off, STF),
                            "store", R(d, 4) + [addr], [], q="V"))

    def build_dag(self):
        lastw = {}; readers = {}
        for k, i in enumerate(self.ins):
            i.idx = k
            ps = set()
            for r in i.reads:
                if r in lastw:
                    ps.add(lastw[r]); i.raw.append(lastw[r])
            for w in i.writes:
                if w in lastw: ps.add(lastw[w])
                for rd in readers.get(w, ()): ps.add(rd)
            ps.discard(i)
            i.preds = list(ps)
            for r in i.reads:
                readers.setdefault(r, []).append(i)
            for w in i.writes:
                lastw[w] = i; readers[w] = []

    def schedule(self, nv, order=None):
        self.build_dag()
        M = [i for i in self.ins if i.q == "M"]
        V = [i for i in self.ins if i.q == "V"]
        out = []
        def dag_ready(i):
            return all(p.pos is not None for p in i.preds)
        def lat_ready(i):
            for p in i.raw:
                if p.kind in MF and i.kind not in MF:
                    if len(out) - p.pos - 1 < mf_lat(p.kind) + 2: return False
            return True
        def emit(i):
            i.pos = len(out); out.append(i)
        mi = vi = 0
        while mi < len(M) or vi < len(V):
            prog = False
            while mi < len(M) and dag_ready(M[mi]):
                i = M[mi]; mi += 1; emit(i); prog = True
                if i.kind in MF: break
            budget = nv
            while vi < len(V) and budget > 0 and dag_ready(V[vi]):
                m_ok = mi < len(M) and dag_ready(M[mi])
                if m_ok and not lat_ready(V[vi]): break
                i = V[vi]; vi += 1; emit(i); prog = True
                budget -= i.units
            assert prog, "scheduler stuck"
        return out

def insert_waits(seq, extra=0):
    out = []; pend = []
    for i in seq:
        touched = set(i.reads) | set(i.writes)
        need = -1
        for k, regs in enumerate(pend):
            if regs & touched: need = k
        if need >= 0:
            cov = 0; k = need + 1
            while k < len(pend) and cov + len(pend[k]) <= 4 * extra:
                cov += len(pend[k]); k += 1
            need = k - 1
            left = len(pend) - (need + 1)
            out.append(Ins("s_waitcnt lgkmcnt(%d)" % min(left, 15), "wait"))
            pend = pend[need + 1:]
        out.append(i)
        if i.kind == "syncd":
            pend = []
        if i.kind == "dsr":
            pend.append(set(i.writes))
    return out

def insert_nops(seq):
    out = []; pos = 0
    lastw = {}
    lastc = {}
    lastst = {}
    for i in seq:
        need = 0
        def req(p, ws):
            nonlocal need
            d = pos - p - 1
            if ws - d > need: need = ws - d
        ismf = i.kind in MF
        isv = i.kind in ("valu", "trans", "perm")
        for r in i.reads:
            if not isinstance(r, int) or r not in lastw: continue
            p, pi = lastw[r]
            if pi.kind in ("valu", "trans", "perm"):
                if ismf: req(p, 2)
                elif i.kind == "perm": req(p, 2)
                elif pi.kind == "trans" and i.kind == "valu": req(p, 1)
                elif pi.kind == "trans": req(p, 1)
            elif pi.kind in MF:
                if ismf:
                    if r in i.srcc and pi.kind == i.kind and pi.writes == i.srcc:
                        pass
                    elif r in i.srcc:
                        req(p, 10 if pi.kind == "mfma32" else 6)
                    else:
                        req(p, mf_lat(pi.kind))
                else:
                    req(p, mf_lat(pi.kind))
        for w in i.writes:
            if not isinstance(w, int): continue
            if w in lastw:
                p, pi = lastw[w]
                if pi.kind in MF:
                    if ismf:
                        if not (pi.kind == i.kind and pi.writes == i.writes):
                            req(p, 10 if pi.kind == "mfma32" else 6)
                    else:
                        req(p, mf_lat(pi.kind))
            if w in lastc and not ismf:
                p, pi = lastc[w]
                req(p, 7 if pi.kind == "mfma32" else 3)
            if w in lastst:
                req(lastst[w], 2)
        if need > 0:
            while need > 0:
                n = min(need, 16)
                out.append(Ins("s_nop %d" % (n - 1), "nop")); pos += n; need -= n
        out.append(i)
        for w in i.writes:
            if isinstance(w, int): lastw[w] = (pos, i)
        for c in i.srcc: lastc[c] = (pos, i)
        if i.kind == "store":
            for r in i.reads: lastst[r] = pos
        pos += 1
    return out

KA32 = 8; VA32 = 16; OA32 = 20
M0, M1, NEG, ALPHA, LA, LB, T0, RCP = 22, 23, 24, 25, 26, 27, 3, 25
VD = 1; Q16A = 2; SEL = 26
ONES = int(os.environ.get("ONES", "1"))
FR = [32, 36, 40, 44, 48, 52]
QF32 = 56; S0 = 88; S1 = 168
O32 = [56, 72, 136, 152]
QF16L = [248, 252, 4, 28]; S0_16 = 56; S1_16 = 136; O16 = 176
KA16 = 208; VA16 = 212; OA16 = 220
FR16 = [32, 36, 40, 44, 48, 52, 224, 228, 232, 236]
OA32B = 21
SC = "s28"; SNC = "s29"

lbl = [0]
import os
STAMP = int(os.environ.get("STAMP", "0"))
stampn = [0]
def stamp():
    if not STAMP: return ""
    k = stampn[0]; stampn[0] += 1
    return "\n    s_memtime s[%d:%d]\n    s_waitcnt lgkmcnt(0)" % (64 + 2 * k, 65 + 2 * k)
def sync_text(vm, cond, post=""):
    body = "s_waitcnt vmcnt(%d)\n    s_barrier%s" % (vm, post)
    if not cond:
        return body + stamp()
    lbl[0] += 1
    return ("s_cmp_eq_u32 s31, 0\n    s_cbranch_scc1 L_skip%d\n    %s\nL_skip%d:" % (lbl[0], body, lbl[0])) + stamp()

def tile(big, syncs=(), twopass=False, vst=(), prio=None):
    P = Prog()
    if big:
        NKT, NKS, SW = 5, 8, 16
        KA, VA, OA = KA32, VA32, OA32
        QFL, SS = [QF32 + 4 * i for i in range(8)], (S0, S1)
        NDT, NKK, OW = 4, 10, 16
        O = O32; fr = FR
        KT_OFF = 8192; KK_OFF, T_OFF = 4096, 2048
        AHEAD = 4
        SELT, LS = 8, 12
    else:
        NKT, NKS, SW = 10, 4, 4
        KA, VA, OA = KA16, VA16, OA16
        QFL, SS = QF16L, (S0_16, S1_16)
        NDT, NKK, OW = 8, 5, 4
        O = [O16 + 4 * i for i in range(8)]; fr = FR16
        KT_OFF = 4096; KK_OFF, T_OFF = 8192, 4096
        AHEAD = 8
        SELT, LS = 208, 240
    NS = NKT * SW
    frc = [0]
    def nextfr():
        f = fr[frc[0] % len(fr)]; frc[0] += 1; return f

    mops = []
    def chk(kind, h, cnt):
        for sy in syncs:
            if sy["at"] == (kind, h, cnt):
                mops.append(("sync", sy))
    def qk(h):
        n = 0
        for kt in range(NKT):
            for ks in range(NKS):
                chk("qk", h, n)
                if h == 1 and n == 0:
                    mops.append(("rebase", KA, NKS))
                mops.append(("qk", h, kt, ks)); n += 1
    def pv(h):
        n = 0
        for kk in range(NKK):
            for dt in range(NDT):
                chk("pv", h, n)
                if h == 1 and n == 0:
                    mops.append(("rebase", VA, NDT))
                mops.append(("pv", h, kk, dt)); n += 1
                if ONES and dt == 0:
                    mops.append(("ls", h, kk))

    if twopass == 3:
        twopass = 0
        qk(0); mops.append(("v", "max0")); qk(1); mops.append(("v", "sm0")); mops.append(("v", "max1"))
        mops.append(("v", "sm1")); pv(0); mops.append(("v", "resc")); pv(1); mops.append(("v", "epi"))
    elif twopass == 2:
        qk(0); mops.append(("v", "max0")); qk(1); mops.append(("v", "max1")); mops.append(("v", "sm0"))
        mops.append(("v", "sm1"))
        pv(0); pv(1); mops.append(("v", "epi"))
    elif twopass:
        qk(0); mops.append(("v", "max0")); qk(1); mops.append(("v", "max1")); mops.append(("v", "sm0"))
        pv(0); mops.append(("v", "sm1")); pv(1); mops.append(("v", "epi"))
    else:
        qk(0); mops.append(("v", "max0")); qk(1); mops.append(("v", "sm0")); mops.append(("v", "max1"))
        pv(0); mops.append(("v", "sm1")); mops.append(("v", "resc")); pv(1); mops.append(("v", "epi"))

    mm_idx = [k for k, o in enumerate(mops) if o[0] in ("qk", "pv")]
    fragof = {}
    issued = set()
    def issue_read(k):
        o = mops[k]
        f = nextfr(); fragof[k] = f
        if o[0] == "qk":
            _, h, kt, ks = o
            P.dsr128(f, KA + ks, kt * KT_OFF, "K%d" % h)
        else:
            _, h, kk, dt = o
            P.dstr(f, VA + dt, kk * KK_OFF, "V%d" % h)
            P.dstr(f + 2, VA + dt, kk * KK_OFF + T_OFF, "V%d" % h)
        issued.add(k)
    done_ctl = set()
    def do_ctl(k):
        o = mops[k]
        if k in done_ctl: return
        done_ctl.add(k)
        if o[0] == "sync":
            sy = o[1]
            si = P.sync(sy["text"] + ("" if sy.get("nostamp") else stamp()), sy.get("tok", "none"))
            si.writes = si.writes + list(sy.get("writes", ()))
            si.reads = si.reads + list(sy.get("reads", ()))
            if sy.get("kind"): si.kind = sy["kind"]
        elif o[0] == "rebase":
            for j in range(o[2]):
                P.valu("v_add_u32 v%d, 0xa000, v%d" % (o[1] + j, o[1] + j), [o[1] + j], [o[1] + j], q="M")

    def reduce_x(x, op):
        perms = ["v_permlane32_swap_b32"] if big else ["v_permlane16_swap_b32", "v_permlane32_swap_b32"]
        for pm in perms:
            P.valu("v_mov_b32 v%d, v%d" % (T0, x), [x], [T0])
            P.perm("%s v%d, v%d" % (pm, x, T0), [x, T0])
            P.valu("%s v%d, v%d, v%d" % (op, x, x, T0), [x, T0], [x])

    def vwork(name):
        if name in ("max0", "max1"):
            h = int(name[3]); s = SS[h]; m = M0 if h == 0 else M1
            if h == 0:
                P.valu("v_max_f32 v%d, v%d, v%d" % (m, s, s + 1), [s, s + 1], [m]); st = 2
            else:
                P.valu("v_max3_f32 v%d, v%d, v%d, v%d" % (m, M0, s, s + 1), [M0, s, s + 1], [m]); st = 2
            for j in range(st, NS, 2):
                P.valu("v_max3_f32 v%d, v%d, v%d, v%d" % (m, m, s + j, s + j + 1), [m, s + j, s + j + 1], [m])
            if not (twopass and h == 0):
                reduce_x(m, "v_max_f32")
            if ONES and h == 1:
                for j in range(4):
                    if big: P.valu("v_mov_b32 v%d, v%d" % (SELT + j, SEL), [SEL], [SELT + j])
                    else: P.valu("v_mov_b32 v%d, 0x3f803f80" % (SELT + j), [], [SELT + j])
        elif name in ("sm0", "sm1"):
            h = int(name[2]); s = SS[h]; m = M0 if h == 0 else M1
            if twopass: m = M1
            if not (twopass and h == 1):
                P.valu("v_mul_f32 v%d, %s, v%d" % (NEG, SNC, m), [m], [NEG])
            if h == 1 and not twopass:
                P.valu("v_fma_f32 v%d, v%d, %s, v%d" % (ALPHA, M0, SC, NEG), [M0, NEG], [ALPHA])
                P.trans("v_exp_f32 v%d, v%d" % (ALPHA, ALPHA), [ALPHA], [ALPHA])
                if not ONES:
                    P.valu("v_add_f32 v%d, v%d, v%d" % (LA, LA, LB), [LA, LB], [LA])
                    P.valu("v_mul_f32 v%d, v%d, v%d" % (LA, LA, ALPHA), [LA, ALPHA], [LA])
            for g in range(NS // 8):
                b = s + 8 * g
                for j in range(8):
                    P.valu("v_fma_f32 v%d, v%d, %s, v%d" % (b + j, b + j, SC, NEG), [b + j, NEG], [b + j])
                for j in range(8):
                    P.trans("v_exp_f32 v%d, v%d" % (b + j, b + j), [b + j], [b + j])
                for j in range(8):
                    if ONES: break
                    acc = LA if (j & 1) == 0 else LB
                    first = (h == 0 and g == 0 and j < 2) or (h == 1 and g == 0 and j == 1 and not twopass)
                    if first:
                        P.valu("v_mov_b32 v%d, v%d" % (acc, b + j), [b + j], [acc])
                    else:
                        P.valu("v_add_f32 v%d, v%d, v%d" % (acc, acc, b + j), [acc, b + j], [acc])
                for j in range(4):
                    d = s + 4 * g + j
                    P.valu("v_cvt_pk_bf16_f32 v%d, v%d, v%d" % (d, b + 2 * j, b + 2 * j + 1),
                           [b + 2 * j, b + 2 * j + 1], [d])
        elif name == "resc":
            if ONES:
                P.valu("v_mul_f32 v%d, v%d, v%d" % (LS, LS, ALPHA), [LS, ALPHA], [LS])
            for o in O:
                for j in range(OW):
                    P.valu("v_mul_f32 v%d, v%d, v%d" % (o + j, o + j, ALPHA), [o + j, ALPHA], [o + j])
        elif name == "epi":
            if ONES:
                P.trans("v_rcp_f32 v%d, v%d" % (RCP, LS), [LS], [RCP])
            else:
                P.valu("v_add_f32 v%d, v%d, v%d" % (LA, LA, LB), [LA, LB], [LA])
                reduce_x(LA, "v_add_f32")
                P.trans("v_rcp_f32 v%d, v%d" % (RCP, LA), [LA], [RCP])
            def cv(o, n):
                for j in range(2 * n):
                    P.valu("v_mul_f32 v%d, v%d, v%d" % (o + j, o + j, RCP), [o + j, RCP], [o + j])
                for j in range(n):
                    P.valu("v_cvt_pk_bf16_f32 v%d, v%d, v%d" % (o + j, o + 2 * j, o + 2 * j + 1),
                           [o + 2 * j, o + 2 * j + 1], [o + j])
            if big:
                for e in range(2):
                    oa, ob = O[2 * e], O[2 * e + 1]
                    cv(oa, 8); cv(ob, 8)
                    for o in (oa, ob):
                        for j in range(4):
                            P.perm("v_permlane32_swap_b32 v%d, v%d" % (o + j, o + 4 + j), [o + j, o + 4 + j])
                    for j in range(8):
                        P.perm("v_permlane16_swap_b32 v%d, v%d" % (oa + j, ob + j), [oa + j, ob + j])
                    P.store4(oa, OA, 64 * e); P.store4(ob, OA32B, 64 * e)
                    P.store4(oa + 4, OA, 128 + 64 * e); P.store4(ob + 4, OA32B, 128 + 64 * e)
            else:
                for e in range(2):
                    ws = []
                    for u in (2 * e, 2 * e + 1):
                        o = O[2 * u]
                        cv(o, 4)
                        P.perm("v_permlane16_swap_b32 v%d, v%d" % (o, o + 2), [o, o + 2])
                        P.perm("v_permlane16_swap_b32 v%d, v%d" % (o + 1, o + 3), [o + 1, o + 3])
                        ws.append(o)
                    for j in range(4):
                        P.perm("v_permlane32_swap_b32 v%d, v%d" % (ws[0] + j, ws[1] + j), [ws[0] + j, ws[1] + j])
                    P.store4(ws[0], OA, 64 * e); P.store4(ws[1], OA, 128 + 64 * e)

    nread = 0
    for pos_k, o in enumerate(mops):
        if o[0] == "v":
            if prio and o[1] in prio:
                P.add(Ins("s_setprio %d" % prio[o[1]], "sync", ([O[-1]] if o[1] == "epi" else []), [], q="V"))
            vwork(o[1])
            if STAMP and vst and o[1] in vst:
                P.add(Ins("s_nop 0" + stamp(), "syncd", [], [], q="V"))
            continue
        if o[0] in ("sync", "rebase"):
            do_ctl(pos_k); continue
        if o[0] == "ls":
            _, h, kk = o
            P.mfma(False, LS, SELT, SS[h] + 4 * kk, h == 0 and kk == 0)
            continue
        j = mm_idx.index(pos_k)
        while nread < len(mm_idx) and nread <= j + AHEAD:
            k = mm_idx[nread]
            if any(mops[c][0] == "sync" and mops[c][1].get("fence") and c not in done_ctl for c in range(pos_k, k)):
                break
            for c in range(pos_k, k):
                if mops[c][0] in ("sync", "rebase"): do_ctl(c)
            issue_read(k); nread += 1
        f = fragof[pos_k]
        if o[0] == "qk":
            _, h, kt, ks = o
            P.mfma(big, SS[h] + SW * kt, f, QFL[ks], ks == 0)
        else:
            _, h, kk, dt = o
            P.mfma(big, O[dt], f, SS[h] + 4 * kk, h == 0 and kk == 0)
    return P

def finish(P, nv, extra=0):
    seq = P.schedule(nv)
    seq = insert_waits(seq, extra)
    seq = insert_nops(seq)
    return seq

def main():
    NV32 = int(os.environ.get("NV32", "8"))
    NV16 = int(os.environ.get("NV16", "4"))
    c = math.log2(math.e) / math.sqrt(128.0)
    L = []
    A = L.append
    hdr = open("standalone__gqa_softmax__near_ridge.s.ref").read().split("\n")
    for line in hdr:
        if line.startswith("; @launch"):
            A("; @launch grid=(256,1,1) block=(512,1,1) lds=163840")
        elif line.startswith(";"):
            A(line)
        else:
            break
    A('.amdgcn_target "amdgcn-amd-amdhsa--gfx950"')
    A(".text")
    A(".globl standalone__gqa_softmax__near_ridge_kernel")
    A(".p2align 8")
    A(".type standalone__gqa_softmax__near_ridge_kernel,@function")
    A("standalone__gqa_softmax__near_ridge_kernel:")
    def sub(txt, b):
        for k in range(1, 8):
            txt = txt.replace("%%%d" % k, "v%d" % (b + k))
        return txt
    lanedec = """
    v_and_b32 %1, 31, v0                   ; r32
    v_lshrrev_b32 %2, 5, v0                ; h
    v_and_b32 %3, 15, v0                   ; r16
    v_lshrrev_b32 %4, 4, v0                ; g (0..3)
    v_lshrrev_b32 %5, 2, v0
    v_and_b32 %5, 3, %5                    ; r4
    v_and_b32 %6, 3, v0                    ; c
"""
    KD = 40; Q32A = 41
    pro = """
    s_cmp_ge_u32 s2, 256
    s_cbranch_scc1 L_end
    s_load_dwordx4 s[4:7], s[0:1], 0
    s_load_dwordx4 s[8:11], s[0:1], 16
    s_load_dwordx2 s[46:47], s[0:1], """ + ("32" if os.environ.get("DBG") else "40") + """
    v_lshrrev_b32 v1, 6, v0
    v_and_b32 v0, 63, v0
    s_nop 0
    v_readfirstlane_b32 s32, v1            ; wave id
    ; workgroup -> (group, head)
    s_and_b32 s33, s2, 7
    s_lshr_b32 s34, s2, 3
    s_lshl_b32 s33, s33, 3
    s_lshr_b32 s35, s34, 2
    s_add_u32 s33, s33, s35                ; kv group
    s_and_b32 s34, s34, 3
    s_lshl_b32 s35, s33, 2
    s_add_u32 s35, s35, s34                ; q head
    s_mul_i32 s30, s35, 81920              ; q/out head byte offset
    s_mul_i32 s36, s33, 81920              ; kv byte offset
    s_mov_b32 s28, """ + f32hex(c) + """
    s_mov_b32 s29, """ + f32hex(-c) + """
    s_and_b32 s37, s32, 3                  ; simd slot
    s_mul_i32 s38, s37, 80                 ; row base
    s_lshr_b32 s31, s32, 2
    s_xor_b32 s31, s31, 1                  ; 1 for B waves (w<4): T32 then T16
    ; T32 row0: B -> 80s ; A -> 80s+32
    s_lshl_b32 s39, s31, 5
    s_sub_u32 s39, 32, s39
    s_add_u32 s39, s39, s38                ; T32 row0
    s_add_u32 s40, s38, 64                 ; T16 row0
""" + lanedec + """
    ; ---- DMA voffsets:  KD=v40  VD=v1
    s_lshl_b32 s41, s37, 2
    v_add_u32 %7, s41, %4                  ; 4(w&3)+(i>>4)
    v_xor_b32 %7, %7, %3
    v_lshlrev_b32 %7, 4, %7
    v_lshl_or_b32 v40, %4, 8, %7
    s_and_b32 s41, s32, 1
    v_lshlrev_b32 %7, 1, %4
    v_or_b32 %7, s41, %7
    v_xor_b32 %7, %7, %3
    v_lshlrev_b32 %7, 4, %7
    v_lshl_or_b32 v1, %4, 8, %7
    s_waitcnt lgkmcnt(0)
    s_mov_b32 s12, s4
    s_and_b32 s13, s5, 0xffff
    s_mov_b32 s14, 20971520
    s_mov_b32 s15, 0x00020000
    s_mov_b32 s16, s6
    s_and_b32 s17, s7, 0xffff
    s_mov_b32 s18, 5242880
    s_mov_b32 s19, 0x00020000
    s_mov_b32 s20, s8
    s_and_b32 s21, s9, 0xffff
    s_mov_b32 s22, 5242880
    s_mov_b32 s23, 0x00020000
    s_mov_b32 s24, s10
    s_and_b32 s25, s11, 0xffff
    s_mov_b32 s26, 20971520
    s_mov_b32 s27, 0x00020000
    s_lshl_b32 s42, s32, 10                ; lds offset = 1024 w
    s_add_u32 s43, s36, s42                ; kv global offset
    s_lshl_b32 s56, s37, 10
    s_add_u32 s57, s36, s56
    s_xor_b32 s58, s31, 1
    s_lshl_b32 s58, s58, 15
    s_add_u32 s58, s58, s56
    s_lshl_b32 s54, s39, 8
    s_add_u32 s54, s54, s30                ; q32 global offset
    s_lshl_b32 s55, s40, 8
    s_add_u32 s55, s55, s30                ; q16 global offset
"""
    if os.environ.get("SPIN0"):
        A("    s_memrealtime s[94:95]")
    A(sub(pro, 32))
    if os.environ.get("SPIN") and not os.environ.get("SPIN0"):
        A("    s_memrealtime s[94:95]\n    s_waitcnt lgkmcnt(0)")
    if STAMP:
        A("".join("    s_mov_b64 s[%d:%d], 0\n" % (64 + 2 * k, 65 + 2 * k) for k in range(12)) + "    s_memrealtime s[88:89]\n" + stamp())
    def dma(ldsoff, sbase, goff, vreg, srd, fl):
        return ("s_add_u32 s44, s42, %d\n    s_mov_b32 m0, s44\n    s_add_u32 s45, %s, %d\n"
                "    buffer_load_dwordx4 v%d, s[%d:%d], s45 offen%s lds\n    " % (ldsoff, sbase, goff, vreg, srd, srd + 3, fl))
    def dma4(ldsoff, sbase, goff, vreg, srd, fl):
        return ("s_add_u32 s44, s56, %d\n    s_mov_b32 m0, s44\n    s_add_u32 s45, %s, %d\n"
                "    buffer_load_dwordx4 v%d, s[%d:%d], s45 offen%s lds\n    " % (ldsoff, sbase, goff, vreg, srd, srd + 3, fl))
    def kdma0():
        return "".join(dma(8192 * n, "s43", 8192 * n, KD, 16, KVF) for n in range(5))
    def kdma1():
        return "".join(dma4(40960 + 4096 * n, "s57", 40960 + 4096 * n, KD, 16, KVF) for n in range(10))
    def q32dma():
        return "".join(dma4(81920 + 4096 * n, "s54", 1024 * n, KD, 12, QF).replace("s56", "s58") for n in range(8))
    def q16dma():
        return "".join(dma4(81920 + 65536 + 4096 * m, "s55", 1024 * m, KD, 12, QF) for m in range(4))
    def vdma(ns):
        return "".join(dma4(81920 + 4096 * n, "s57", 4096 * n, VD, 20, KVF) for n in ns)
    A("    " + kdma0())
    if int(os.environ.get("BAR0", "1")): A("    s_barrier")
    A("    s_cmp_eq_u32 s31, 0")
    A("    s_cbranch_scc1 L_noq")
    A("    " + q32dma())
    A("    s_branch L_q2")
    A("L_noq:")
    A("    " + kdma1())
    A("L_q2:")
    if STAMP: A(stamp())
    addr32 = """
    ; ---- KA32
    v_xor_b32 %7, %2, %3
    v_lshlrev_b32 %7, 4, %7
    v_lshl_or_b32 v8, %1, 8, %7
    v_xor_b32 v9, 32, v8
    v_xor_b32 v10, 64, v8
    v_xor_b32 v11, 0x60, v8
    v_xor_b32 v12, 0x80, v8
    v_xor_b32 v13, 0xa0, v8
    v_xor_b32 v14, 0xc0, v8
    v_xor_b32 v15, 0xe0, v8
    ; ---- VA32: 81920 + (4h+r4)*256 + (8(c&1) + 2 r4 + (g'^h))*16 + 8(c>>1)
    v_lshl_add_u32 %7, %2, 2, %5           ; 4h+r4
    v_lshlrev_b32 %7, 8, %7
    v_and_b32 v16, 1, %6
    v_lshlrev_b32 v16, 3, v16
    v_lshl_add_u32 v16, %5, 1, v16
    v_and_b32 v17, 1, %4
    v_xor_b32 v17, v17, %2
    v_add_u32 v16, v16, v17
    v_lshl_add_u32 %7, v16, 4, %7
    v_lshrrev_b32 v16, 1, %6
    v_lshl_add_u32 %7, v16, 3, %7
    v_add_u32 v16, 0x14000, %7
    v_xor_b32 v17, 32, v16
    v_xor_b32 v18, 64, v16
    v_xor_b32 v19, 0x60, v16
    v_add_u32 %7, s39, %3
    v_lshlrev_b32 %7, 8, %7
    v_and_b32 v20, 1, %4
    v_lshl_add_u32 v20, v20, 1, %2
    v_lshl_add_u32 v20, v20, 4, %7
    v_add_u32 v21, 0x1000, v20
    ; ---- SEL (v26)
    v_xor_b32 %7, %5, %4
    v_and_b32 %7, 1, %7
    v_or_b32 %7, %7, %6
    v_mov_b32 v42, 0x3f803f80
    v_cmp_eq_u32 vcc, 0, %7
    v_cndmask_b32 v26, 0, v42, vcc
    s_lshl_b32 s41, s37, 2
    s_add_u32 s44, s58, 0x14000
    v_add_u32 v42, s41, %6                 ; x = 4(w&3) + (r&3)
    v_xor_b32 v41, v42, %2
    v_lshlrev_b32 v41, 4, v41
    v_lshl_add_u32 v41, %6, 8, v41
    v_lshrrev_b32 %7, 2, %1
    v_lshl_add_u32 v41, %7, 12, v41
    v_add_u32 v41, s44, v41
    v_add_u32 %7, s40, %3
    v_lshlrev_b32 %7, 8, %7
    v_lshl_add_u32 v2, %4, 4, %7
"""
    A(sub(addr32, 32))
    def q32read():
        t = ""
        for ks in range(8):
            d = QF32 + 4 * ks
            t += "v_xor_b32 v%d, 0x%x, v41\n    " % (d, 32 * ks)
        for ks in range(8):
            d = QF32 + 4 * ks
            t += "ds_read_b128 v[%d:%d], v%d\n    " % (d, d + 3, d)
        return t + "s_waitcnt lgkmcnt(0)\n    "
    def q16read():
        t = ""
        for ks in range(4):
            d = QF16L[ks]
            t += "v_xor_b32 v%d, 0x%x, v2\n    " % (d, 64 * ks)
        for ks in range(4):
            d = QF16L[ks]
            t += "ds_read_b128 v[%d:%d], v%d\n    " % (d, d + 3, d)
        return t + "s_waitcnt lgkmcnt(0)\n    "
    def pos(e, d):
        v = os.environ.get(e, d).split(",")
        return (v[0], int(v[1]), int(v[2]))
    X32 = int(os.environ.get('X32', '1'))
    A("    s_cmp_eq_u32 s31, 1")
    A("    s_cbranch_scc1 L_B")
    A("    s_waitcnt vmcnt(10)")
    A("    s_barrier")
    if STAMP: A(stamp())
    A("    " + q32dma())
    A("    s_waitcnt vmcnt(8)")
    A("    s_barrier")
    if STAMP: A(stamp())
    A("    " + vdma(range(8)) + vdma(range(16, 20)))
    A("    s_waitcnt vmcnt(12)")
    if STAMP: A(stamp())
    A("    " + q32read() + vdma(range(8, 16)))
    if int(os.environ.get("PRIOA", "0")): A("    s_setprio %d" % int(os.environ.get("PRIOA", "0")))
    PH = int(os.environ.get("PH", "0"))
    syA = [dict(at=pos("A2", "qk,1,30"), text="s_waitcnt vmcnt(0)\n    s_barrier")]
    prioA = prioB = prio16 = None
    if PH:
        A("    s_setprio %d" % int(os.environ.get("PQA", "2")))
        syA.append(dict(at=("pv", 0, 0), text="s_setprio 2", fence=True, reads=R(S0, 40) + R(S1, 40), nostamp=True))
        prioA = {"sm0": 0, "epi": 0}
        prioB = {"sm0": 0, "epi": 0} if os.environ.get("TPB", "2") != "3" else {"max1": 0, "epi": 0}
    PA = tile(True, syA, twopass=int(os.environ.get("TPA", "1")), vst=os.environ.get("VSTA", "").split(","), prio=prioA)
    seqA = finish(PA, NV32, X32)
    for i in seqA: A("    " + i.text)
    if STAMP: A(stamp())
    A("    s_branch L_fin")
    A("L_B:")
    if PH: A("    s_setprio 2")
    if int(os.environ.get("PRIO", "0")): A("    s_setprio %d" % int(os.environ.get("PRIO", "0")))
    stampn[0] = 2
    A("    s_waitcnt vmcnt(0)")
    if STAMP: A(stamp())
    A("    " + q32read())
    A("    s_barrier")
    if STAMP: A(stamp())
    TPB = int(os.environ.get("TPB", "2"))
    q16 = ""
    for ks in range(4):
        q16 += "buffer_load_dwordx4 v[%d:%d], v2, s[12:15], s30 offen offset:%d%s\n    " % (QF16L[ks], QF16L[ks] + 3, 64 * ks, _fl("Q16F", "none"))
    syB = [dict(at=("qk", 1, 0), text="s_barrier"),
           dict(at=("pv", 0, 0), text=q16 + "s_barrier" + ("\n    s_setprio 2" if PH else ""), fence=(TPB >= 2), reads=(R(S0, 40) + R(S1, 40) if TPB >= 2 else []))]
    P32 = tile(True, syB, twopass=TPB, vst=os.environ.get("VSTB", "").split(","), prio=prioB)
    seq32 = finish(P32, NV32, X32)
    for i in seq32: A("    " + i.text)
    if STAMP: A(stamp())
    if os.environ.get("PRIO16"): A("    s_setprio %d" % int(os.environ.get("PRIO16")))
    addr16 = lanedec + """
    ; ---- KA16 = ((r<<8) | ((g^r)<<4)) ^ (ks<<6)
    v_xor_b32 %7, %4, %3
    v_lshlrev_b32 %7, 4, %7
    v_lshl_or_b32 v208, %3, 8, %7
    v_xor_b32 v209, 64, v208
    v_xor_b32 v210, 0x80, v208
    v_xor_b32 v211, 0xc0, v208
    ; ---- VA16: 81920 + (4g+r4)*256 + (8c1 | 2 r4 | (g&1))*16 + 8 c0
    v_lshl_add_u32 %7, %4, 2, %5
    v_lshlrev_b32 %7, 8, %7
    v_lshrrev_b32 v212, 1, %6
    v_lshlrev_b32 v212, 3, v212
    v_lshl_add_u32 v212, %5, 1, v212
    v_and_b32 v213, 1, %4
    v_add_u32 v212, v212, v213
    v_lshl_add_u32 %7, v212, 4, %7
    v_and_b32 v212, 1, %6
    v_lshl_add_u32 %7, v212, 3, %7
    v_add_u32 v212, 0x14000, %7
    v_xor_b32 v213, 16, v212
    v_xor_b32 v214, 32, v212
    v_xor_b32 v215, 48, v212
    v_xor_b32 v216, 64, v212
    v_xor_b32 v217, 0x50, v212
    v_xor_b32 v218, 0x60, v212
    v_xor_b32 v219, 0x70, v212
    ; ---- OA16 = (row0+r16)*256 + 16 g
    v_add_u32 %7, s40, %3
    v_lshlrev_b32 %7, 8, %7
    v_lshl_add_u32 v220, %4, 4, %7
"""
    A(sub(addr16, 240))
    A("    s_waitcnt vmcnt(8)")
    TP16 = int(os.environ.get("TP16", "0"))
    sy16 = []
    if PH and TP16 == 2:
        A("    s_setprio 2")
        sy16 = [dict(at=("pv", 0, 0), text="s_setprio 2", fence=True, reads=R(S0_16, 20) + R(S1_16, 20), nostamp=True)]
        prio16 = {"sm0": 0, "epi": 0}
    P16 = tile(False, sy16, TP16, prio=prio16)
    seq16 = finish(P16, NV16, int(os.environ.get('X16', '3')))
    for i in seq16: A("    " + i.text)
    A("L_fin:")
    if os.environ.get("SPIN"):
        A("L_sp:")
        A("    s_memrealtime s[96:97]\n    s_waitcnt lgkmcnt(0)")
        A("    s_sub_u32 s53, s96, s94")
        A("    s_cmp_lt_u32 s53, %d" % int(os.environ["SPIN"]))
        A("    s_cbranch_scc1 L_sp")
    if os.environ.get("DELAY"):
        A("    s_mov_b32 s53, %d" % int(os.environ["DELAY"]))
        A("L_dl:")
        A("    s_nop 15\n    s_nop 15\n    s_nop 15")
        A("    s_sub_u32 s53, s53, 1")
        A("    s_cmp_lg_u32 s53, 0")
        A("    s_cbranch_scc1 L_dl")
    if STAMP:
        stampn[0] = 11
        A(stamp())
        A("    s_waitcnt vmcnt(0)")
        A("    s_memrealtime s[90:91]")
        A("    s_memtime s[92:93]")
        A("    s_waitcnt lgkmcnt(0)")
        if os.environ.get("DBG"):
            sl = [1, 2, 3, 4, 5, 6, 11, 14]
            A("    s_cmp_lg_u32 s2, %d" % int(os.environ["DBG"]))
            A("    s_cbranch_scc1 L_end")
            A("    s_and_b32 s52, s32, 3")
            A("    s_cmp_lg_u32 s52, 0")
            A("    s_cbranch_scc1 L_end")
            A("    s_mov_b32 s48, s46")
            A("    s_and_b32 s49, s47, 0xffff")
            A("    s_mov_b32 s50, 256")
            A("    s_mov_b32 s51, 0x00020000")
            A("    s_lshl_b32 s52, s32, 3")
            A("    s_mov_b64 exec, 1")
            A("    v_mov_b32 v1, 0")
            for j, k in enumerate(sl):
                A("    s_sub_u32 s53, s%d, s64" % (64 + 2 * k))
                A("    v_mov_b32 v2, s53")
                A("    buffer_store_dword v2, v1, s[48:51], s52 offen offset:%d" % (4 * j))
            A("    s_branch L_end")
        A("    s_mov_b32 s48, s46")
        A("    s_and_b32 s49, s47, 0xffff")
        A("    s_mov_b32 s50, 0x1000000")
        A("    s_mov_b32 s51, 0x00020000")
        A("    s_lshl_b32 s52, s2, 3")
        A("    s_add_u32 s52, s52, s32")
        A("    s_mul_i32 s52, s52, 64")
        A("    s_mov_b64 exec, 1")
        A("    v_mov_b32 v1, 0")
        for k in range(15):
            A("    v_mov_b32 v2, s%d" % (64 + 2 * k))
            A("    buffer_store_dword v2, v1, s[48:51], s52 offen offset:%d" % (4 * k))
    A("L_end:")
    A("    s_endpgm")
    A('.section .rodata,"a"')
    A(".p2align 6")
    A(".amdhsa_kernel standalone__gqa_softmax__near_ridge_kernel")
    A("  .amdhsa_next_free_vgpr 256")
    A("  .amdhsa_next_free_sgpr 100")
    A("  .amdhsa_accum_offset 256")
    A("  .amdhsa_group_segment_fixed_size 0")
    A("  .amdhsa_kernarg_size 48")
    A("  .amdhsa_user_sgpr_count 2")
    A("  .amdhsa_user_sgpr_kernarg_segment_ptr 1")
    A("  .amdhsa_system_sgpr_workgroup_id_x 1")
    A(".end_amdhsa_kernel")
    open(OUT, "w").write("\n".join(L) + "\n")
    def stat(seq):
        from collections import Counter
        return Counter(i.kind for i in seq)
    print("T16", stat(seq16)); print("T32", stat(seq32))

main()
```

```python
import struct, sys, math

import os
OUT = os.environ.get("OUT", "standalone__gqa_softmax__near_ridge.s")

def _fl(e, d):
    v = os.environ.get(e, d)
    return (" " + v) if v and v != "none" else ""
STF = _fl("STF", "sc1"); QF = _fl("QF", "nt"); KVF = _fl("KVF", "nt")
def f32hex(x):
    return "0x%08x" % struct.unpack("<I", struct.pack("<f", x))[0]

def vr(a, n):
    return "v%d" % a if n == 1 else "v[%d:%d]" % (a, a + n - 1)

class Ins:
    __slots__ = ("text", "kind", "reads", "writes", "srcc", "q", "units", "preds", "pos", "idx", "raw")
    def __init__(self, text, kind, reads=(), writes=(), srcc=(), q="V", units=1):
        self.text = text; self.kind = kind
        self.reads = list(reads); self.writes = list(writes); self.srcc = list(srcc)
        self.q = q; self.units = units; self.preds = []; self.pos = None; self.raw = []

def R(a, n=1):
    return list(range(a, a + n))

MF = ("mfma32", "mfma16")
def mf_lat(kind):
    return 12 if kind == "mfma32" else 8

class Prog:
    def __init__(self):
        self.ins = []
    def add(self, i):
        self.ins.append(i); return i
    def valu(self, text, reads, writes, q="V"):
        return self.add(Ins(text, "valu", reads, writes, q=q))
    def trans(self, text, reads, writes, q="V"):
        return self.add(Ins(text, "trans", reads, writes, q=q, units=2))
    def perm(self, text, regs, q="V"):
        return self.add(Ins(text, "perm", regs, regs, q=q))
    def mfma(self, big, d, a, b, first):
        n = 16 if big else 4
        name = "v_mfma_f32_32x32x16_bf16" if big else "v_mfma_f32_16x16x32_bf16"
        c = "0" if first else vr(d, n)
        reads = R(a, 4) + R(b, 4) + ([] if first else R(d, n))
        return self.add(Ins("%s %s, %s, %s, %s" % (name, vr(d, n), vr(a, 4), vr(b, 4), c),
                            "mfma32" if big else "mfma16", reads, R(d, n),
                            srcc=([] if first else R(d, n)), q="M"))
    def dsr128(self, d, addr, off, tok):
        return self.add(Ins("ds_read_b128 %s, v%d offset:%d" % (vr(d, 4), addr, off), "dsr",
                            [addr, tok], R(d, 4), q="M"))
    def dstr(self, d, addr, off, tok):
        return self.add(Ins("ds_read_b64_tr_b16 %s, v%d offset:%d" % (vr(d, 2), addr, off), "dsr",
                            [addr, tok], R(d, 2), q="M"))
    def sync(self, text, tok):
        return self.add(Ins(text, "sync", [], [tok], q="M"))
    def store4(self, d, addr, off):
        return self.add(Ins("buffer_store_dwordx4 %s, v%d, s[24:27], s30 offen offset:%d%s" % (vr(d, 4), addr, off, STF),
                            "store", R(d, 4) + [addr], [], q="V"))

    def build_dag(self):
        lastw = {}; readers = {}
        for k, i in enumerate(self.ins):
            i.idx = k
            ps = set()
            for r in i.reads:
                if r in lastw:
                    ps.add(lastw[r]); i.raw.append(lastw[r])
            for w in i.writes:
                if w in lastw: ps.add(lastw[w])
                for rd in readers.get(w, ()): ps.add(rd)
            ps.discard(i)
            i.preds = list(ps)
            for r in i.reads:
                readers.setdefault(r, []).append(i)
            for w in i.writes:
                lastw[w] = i; readers[w] = []

    def schedule(self, nv, order=None):
        self.build_dag()
        M = [i for i in self.ins if i.q == "M"]
        V = [i for i in self.ins if i.q == "V"]
        out = []
        def dag_ready(i):
            return all(p.pos is not None for p in i.preds)
        def lat_ready(i):
            for p in i.raw:
                if p.kind in MF and i.kind not in MF:
                    if len(out) - p.pos - 1 < mf_lat(p.kind) + 2: return False
            return True
        def emit(i):
            i.pos = len(out); out.append(i)
        mi = vi = 0
        while mi < len(M) or vi < len(V):
            prog = False
            while mi < len(M) and dag_ready(M[mi]):
                i = M[mi]; mi += 1; emit(i); prog = True
                if i.kind in MF: break
            budget = nv
            while vi < len(V) and budget > 0 and dag_ready(V[vi]):
                m_ok = mi < len(M) and dag_ready(M[mi])
                if m_ok and not lat_ready(V[vi]): break
                i = V[vi]; vi += 1; emit(i); prog = True
                budget -= i.units
            assert prog, "scheduler stuck"
        return out

def insert_waits(seq, extra=0):
    out = []; pend = []
    for i in seq:
        touched = set(i.reads) | set(i.writes)
        need = -1
        for k, regs in enumerate(pend):
            if regs & touched: need = k
        if need >= 0:
            cov = 0; k = need + 1
            while k < len(pend) and cov + len(pend[k]) <= 4 * extra:
                cov += len(pend[k]); k += 1
            need = k - 1
            left = len(pend) - (need + 1)
            out.append(Ins("s_waitcnt lgkmcnt(%d)" % min(left, 15), "wait"))
            pend = pend[need + 1:]
        out.append(i)
        if i.kind == "syncd":
            pend = []
        if i.kind == "dsr":
            pend.append(set(i.writes))
    return out

def insert_nops(seq):
    out = []; pos = 0
    lastw = {}
    lastc = {}
    lastst = {}
    for i in seq:
        need = 0
        def req(p, ws):
            nonlocal need
            d = pos - p - 1
            if ws - d > need: need = ws - d
        ismf = i.kind in MF
        isv = i.kind in ("valu", "trans", "perm")
        for r in i.reads:
            if not isinstance(r, int) or r not in lastw: continue
            p, pi = lastw[r]
            if pi.kind in ("valu", "trans", "perm"):
                if ismf: req(p, 2)
                elif i.kind == "perm": req(p, 2)
                elif pi.kind == "trans" and i.kind == "valu": req(p, 1)
                elif pi.kind == "trans": req(p, 1)
            elif pi.kind in MF:
                if ismf:
                    if r in i.srcc and pi.kind == i.kind and pi.writes == i.srcc:
                        pass
                    elif r in i.srcc:
                        req(p, 10 if pi.kind == "mfma32" else 6)
                    else:
                        req(p, mf_lat(pi.kind))
                else:
                    req(p, mf_lat(pi.kind))
        for w in i.writes:
            if not isinstance(w, int): continue
            if w in lastw:
                p, pi = lastw[w]
                if pi.kind in MF:
                    if ismf:
                        if not (pi.kind == i.kind and pi.writes == i.writes):
                            req(p, 10 if pi.kind == "mfma32" else 6)
                    else:
                        req(p, mf_lat(pi.kind))
            if w in lastc and not ismf:
                p, pi = lastc[w]
                req(p, 7 if pi.kind == "mfma32" else 3)
            if w in lastst:
                req(lastst[w], 2)
        if need > 0:
            while need > 0:
                n = min(need, 16)
                out.append(Ins("s_nop %d" % (n - 1), "nop")); pos += n; need -= n
        out.append(i)
        for w in i.writes:
            if isinstance(w, int): lastw[w] = (pos, i)
        for c in i.srcc: lastc[c] = (pos, i)
        if i.kind == "store":
            for r in i.reads: lastst[r] = pos
        pos += 1
    return out

KA32 = 8; VA32 = 16; OA32 = 20
M0, M1, NEG, ALPHA, LA, LB, T0, RCP = 22, 23, 24, 25, 26, 27, 3, 25
VD = 1; Q16A = 2; SEL = 26
ONES = int(os.environ.get("ONES", "1"))
FR = [32, 36, 40, 44, 48, 52]
QF32 = 56; S0 = 88; S1 = 168
O32 = [56, 72, 136, 152]
QF16L = [248, 252, 4, 28]; S0_16 = 56; S1_16 = 136; O16 = 176
KA16 = 208; VA16 = 212; OA16 = 220
FR16 = [32, 36, 40, 44, 48, 52, 224, 228, 232, 236]
OA32B = 21
SC = "s28"; SNC = "s29"

lbl = [0]
import os
STAMP = int(os.environ.get("STAMP", "0"))
stampn = [0]
def stamp():
    if not STAMP: return ""
    k = stampn[0]; stampn[0] += 1
    return "\n    s_memtime s[%d:%d]\n    s_waitcnt lgkmcnt(0)" % (64 + 2 * k, 65 + 2 * k)
def sync_text(vm, cond, post=""):
    body = "s_waitcnt vmcnt(%d)\n    s_barrier%s" % (vm, post)
    if not cond:
        return body + stamp()
    lbl[0] += 1
    return ("s_cmp_eq_u32 s31, 0\n    s_cbranch_scc1 L_skip%d\n    %s\nL_skip%d:" % (lbl[0], body, lbl[0])) + stamp()

def tile(big, syncs=(), twopass=False, vst=(), prio=None):
    P = Prog()
    if big:
        NKT, NKS, SW = 5, 8, 16
        KA, VA, OA = KA32, VA32, OA32
        QFL, SS = [QF32 + 4 * i for i in range(8)], (S0, S1)
        NDT, NKK, OW = 4, 10, 16
        O = O32; fr = FR
        KT_OFF = 8192; KK_OFF, T_OFF = 4096, 2048
        AHEAD = 4
        SELT, LS = 8, 12
    else:
        NKT, NKS, SW = 10, 4, 4
        KA, VA, OA = KA16, VA16, OA16
        QFL, SS = QF16L, (S0_16, S1_16)
        NDT, NKK, OW = 8, 5, 4
        O = [O16 + 4 * i for i in range(8)]; fr = FR16
        KT_OFF = 4096; KK_OFF, T_OFF = 8192, 4096
        AHEAD = 8
        SELT, LS = 208, 240
    NS = NKT * SW
    frc = [0]
    def nextfr():
        f = fr[frc[0] % len(fr)]; frc[0] += 1; return f

    mops = []
    def chk(kind, h, cnt):
        for sy in syncs:
            if sy["at"] == (kind, h, cnt):
                mops.append(("sync", sy))
    def qk(h):
        n = 0
        for kt in range(NKT):
            for ks in range(NKS):
                chk("qk", h, n)
                if h == 1 and n == 0:
                    mops.append(("rebase", KA, NKS))
                mops.append(("qk", h, kt, ks)); n += 1
    def pv(h):
        n = 0
        for kk in range(NKK):
            for dt in range(NDT):
                chk("pv", h, n)
                if h == 1 and n == 0:
                    mops.append(("rebase", VA, NDT))
                mops.append(("pv", h, kk, dt)); n += 1
                if ONES and dt == 0:
                    mops.append(("ls", h, kk))

    if twopass == 3:
        twopass = 0
        qk(0); mops.append(("v", "max0")); qk(1); mops.append(("v", "sm0")); mops.append(("v", "max1"))
        mops.append(("v", "sm1")); pv(0); mops.append(("v", "resc")); pv(1); mops.append(("v", "epi"))
    elif twopass == 2:
        qk(0); mops.append(("v", "max0")); qk(1); mops.append(("v", "max1")); mops.append(("v", "sm0"))
        mops.append(("v", "sm1"))
        pv(0); pv(1); mops.append(("v", "epi"))
    elif twopass:
        qk(0); mops.append(("v", "max0")); qk(1); mops.append(("v", "max1")); mops.append(("v", "sm0"))
        pv(0); mops.append(("v", "sm1")); pv(1); mops.append(("v", "epi"))
    else:
        qk(0); mops.append(("v", "max0")); qk(1); mops.append(("v", "sm0")); mops.append(("v", "max1"))
        pv(0); mops.append(("v", "sm1")); mops.append(("v", "resc")); pv(1); mops.append(("v", "epi"))

    mm_idx = [k for k, o in enumerate(mops) if o[0] in ("qk", "pv")]
    fragof = {}
    issued = set()
    def issue_read(k):
        o = mops[k]
        f = nextfr(); fragof[k] = f
        if o[0] == "qk":
            _, h, kt, ks = o
            P.dsr128(f, KA + ks, kt * KT_OFF, "K%d" % h)
        else:
            _, h, kk, dt = o
            P.dstr(f, VA + dt, kk * KK_OFF, "V%d" % h)
            P.dstr(f + 2, VA + dt, kk * KK_OFF + T_OFF, "V%d" % h)
        issued.add(k)
    done_ctl = set()
    def do_ctl(k):
        o = mops[k]
        if k in done_ctl: return
        done_ctl.add(k)
        if o[0] == "sync":
            sy = o[1]
            si = P.sync(sy["text"] + ("" if sy.get("nostamp") else stamp()), sy.get("tok", "none"))
            si.writes = si.writes + list(sy.get("writes", ()))
            si.reads = si.reads + list(sy.get("reads", ()))
            if sy.get("kind"): si.kind = sy["kind"]
        elif o[0] == "rebase":
            for j in range(o[2]):
                P.valu("v_add_u32 v%d, 0xa000, v%d" % (o[1] + j, o[1] + j), [o[1] + j], [o[1] + j], q="M")

    def reduce_x(x, op):
        perms = ["v_permlane32_swap_b32"] if big else ["v_permlane16_swap_b32", "v_permlane32_swap_b32"]
        for pm in perms:
            P.valu("v_mov_b32 v%d, v%d" % (T0, x), [x], [T0])
            P.perm("%s v%d, v%d" % (pm, x, T0), [x, T0])
            P.valu("%s v%d, v%d, v%d" % (op, x, x, T0), [x, T0], [x])

    def vwork(name):
        if name in ("max0", "max1"):
            h = int(name[3]); s = SS[h]; m = M0 if h == 0 else M1
            if h == 0:
                P.valu("v_max_f32 v%d, v%d, v%d" % (m, s, s + 1), [s, s + 1], [m]); st = 2
            else:
                P.valu("v_max3_f32 v%d, v%d, v%d, v%d" % (m, M0, s, s + 1), [M0, s, s + 1], [m]); st = 2
            for j in range(st, NS, 2):
                P.valu("v_max3_f32 v%d, v%d, v%d, v%d" % (m, m, s + j, s + j + 1), [m, s + j, s + j + 1], [m])
            if not (twopass and h == 0):
                reduce_x(m, "v_max_f32")
            if ONES and h == 1:
                for j in range(4):
                    if big: P.valu("v_mov_b32 v%d, v%d" % (SELT + j, SEL), [SEL], [SELT + j])
                    else: P.valu("v_mov_b32 v%d, 0x3f803f80" % (SELT + j), [], [SELT + j])
        elif name in ("sm0", "sm1"):
            h = int(name[2]); s = SS[h]; m = M0 if h == 0 else M1
            if twopass: m = M1
            if not (twopass and h == 1):
                P.valu("v_mul_f32 v%d, %s, v%d" % (NEG, SNC, m), [m], [NEG])
            if h == 1 and not twopass:
                P.valu("v_fma_f32 v%d, v%d, %s, v%d" % (ALPHA, M0, SC, NEG), [M0, NEG], [ALPHA])
                P.trans("v_exp_f32 v%d, v%d" % (ALPHA, ALPHA), [ALPHA], [ALPHA])
                if not ONES:
                    P.valu("v_add_f32 v%d, v%d, v%d" % (LA, LA, LB), [LA, LB], [LA])
                    P.valu("v_mul_f32 v%d, v%d, v%d" % (LA, LA, ALPHA), [LA, ALPHA], [LA])
            for g in range(NS // 8):
                b = s + 8 * g
                for j in range(8):
                    P.valu("v_fma_f32 v%d, v%d, %s, v%d" % (b + j, b + j, SC, NEG), [b + j, NEG], [b + j])
                for j in range(8):
                    P.trans("v_exp_f32 v%d, v%d" % (b + j, b + j), [b + j], [b + j])
                for j in range(8):
                    if ONES: break
                    acc = LA if (j & 1) == 0 else LB
                    first = (h == 0 and g == 0 and j < 2) or (h == 1 and g == 0 and j == 1 and not twopass)
                    if first:
                        P.valu("v_mov_b32 v%d, v%d" % (acc, b + j), [b + j], [acc])
                    else:
                        P.valu("v_add_f32 v%d, v%d, v%d" % (acc, acc, b + j), [acc, b + j], [acc])
                for j in range(4):
                    d = s + 4 * g + j
                    P.valu("v_cvt_pk_bf16_f32 v%d, v%d, v%d" % (d, b + 2 * j, b + 2 * j + 1),
                           [b + 2 * j, b + 2 * j + 1], [d])
        elif name == "resc":
            if ONES:
                P.valu("v_mul_f32 v%d, v%d, v%d" % (LS, LS, ALPHA), [LS, ALPHA], [LS])
            for o in O:
                for j in range(OW):
                    P.valu("v_mul_f32 v%d, v%d, v%d" % (o + j, o + j, ALPHA), [o + j, ALPHA], [o + j])
        elif name == "epi":
            if ONES:
                P.trans("v_rcp_f32 v%d, v%d" % (RCP, LS), [LS], [RCP])
            else:
                P.valu("v_add_f32 v%d, v%d, v%d" % (LA, LA, LB), [LA, LB], [LA])
                reduce_x(LA, "v_add_f32")
                P.trans("v_rcp_f32 v%d, v%d" % (RCP, LA), [LA], [RCP])
            def cv(o, n):
                for j in range(2 * n):
                    P.valu("v_mul_f32 v%d, v%d, v%d" % (o + j, o + j, RCP), [o + j, RCP], [o + j])
                for j in range(n):
                    P.valu("v_cvt_pk_bf16_f32 v%d, v%d, v%d" % (o + j, o + 2 * j, o + 2 * j + 1),
                           [o + 2 * j, o + 2 * j + 1], [o + j])
            if big:
                for e in range(2):
                    oa, ob = O[2 * e], O[2 * e + 1]
                    cv(oa, 8); cv(ob, 8)
                    for o in (oa, ob):
                        for j in range(4):
                            P.perm("v_permlane32_swap_b32 v%d, v%d" % (o + j, o + 4 + j), [o + j, o + 4 + j])
                    for j in range(8):
                        P.perm("v_permlane16_swap_b32 v%d, v%d" % (oa + j, ob + j), [oa + j, ob + j])
                    P.store4(oa, OA, 64 * e); P.store4(ob, OA32B, 64 * e)
                    P.store4(oa + 4, OA, 128 + 64 * e); P.store4(ob + 4, OA32B, 128 + 64 * e)
            else:
                for e in range(2):
                    ws = []
                    for u in (2 * e, 2 * e + 1):
                        o = O[2 * u]
                        cv(o, 4)
                        P.perm("v_permlane16_swap_b32 v%d, v%d" % (o, o + 2), [o, o + 2])
                        P.perm("v_permlane16_swap_b32 v%d, v%d" % (o + 1, o + 3), [o + 1, o + 3])
                        ws.append(o)
                    for j in range(4):
                        P.perm("v_permlane32_swap_b32 v%d, v%d" % (ws[0] + j, ws[1] + j), [ws[0] + j, ws[1] + j])
                    P.store4(ws[0], OA, 64 * e); P.store4(ws[1], OA, 128 + 64 * e)

    nread = 0
    for pos_k, o in enumerate(mops):
        if o[0] == "v":
            if prio and o[1] in prio:
                P.add(Ins("s_setprio %d" % prio[o[1]], "sync", ([O[-1]] if o[1] == "epi" else []), [], q="V"))
            vwork(o[1])
            if STAMP and vst and o[1] in vst:
                P.add(Ins("s_nop 0" + stamp(), "syncd", [], [], q="V"))
            continue
        if o[0] in ("sync", "rebase"):
            do_ctl(pos_k); continue
        if o[0] == "ls":
            _, h, kk = o
            P.mfma(False, LS, SELT, SS[h] + 4 * kk, h == 0 and kk == 0)
            continue
        j = mm_idx.index(pos_k)
        while nread < len(mm_idx) and nread <= j + AHEAD:
            k = mm_idx[nread]
            if any(mops[c][0] == "sync" and mops[c][1].get("fence") and c not in done_ctl for c in range(pos_k, k)):
                break
            for c in range(pos_k, k):
                if mops[c][0] in ("sync", "rebase"): do_ctl(c)
            issue_read(k); nread += 1
        f = fragof[pos_k]
        if o[0] == "qk":
            _, h, kt, ks = o
            P.mfma(big, SS[h] + SW * kt, f, QFL[ks], ks == 0)
        else:
            _, h, kk, dt = o
            P.mfma(big, O[dt], f, SS[h] + 4 * kk, h == 0 and kk == 0)
    return P

def finish(P, nv, extra=0):
    seq = P.schedule(nv)
    seq = insert_waits(seq, extra)
    seq = insert_nops(seq)
    return seq

def main():
    NV32 = int(os.environ.get("NV32", "8"))
    NV16 = int(os.environ.get("NV16", "4"))
    c = math.log2(math.e) / math.sqrt(128.0)
    L = []
    A = L.append
    hdr = open("standalone__gqa_softmax__near_ridge.s.ref").read().split("\n")
    for line in hdr:
        if line.startswith("; @launch"):
            A("; @launch grid=(256,1,1) block=(512,1,1) lds=163840")
        elif line.startswith(";"):
            A(line)
        else:
            break
    A('.amdgcn_target "amdgcn-amd-amdhsa--gfx950"')
    A(".text")
    A(".globl standalone__gqa_softmax__near_ridge_kernel")
    A(".p2align 8")
    A(".type standalone__gqa_softmax__near_ridge_kernel,@function")
    A("standalone__gqa_softmax__near_ridge_kernel:")
    def sub(txt, b):
        for k in range(1, 8):
            txt = txt.replace("%%%d" % k, "v%d" % (b + k))
        return txt
    lanedec = """
    v_and_b32 %1, 31, v0                   ; r32
    v_lshrrev_b32 %2, 5, v0                ; h
    v_and_b32 %3, 15, v0                   ; r16
    v_lshrrev_b32 %4, 4, v0                ; g (0..3)
    v_lshrrev_b32 %5, 2, v0
    v_and_b32 %5, 3, %5                    ; r4
    v_and_b32 %6, 3, v0                    ; c
"""
    KD = 40; Q32A = 41
    pro = """
    s_cmp_ge_u32 s2, 256
    s_cbranch_scc1 L_end
    s_load_dwordx4 s[4:7], s[0:1], 0
    s_load_dwordx4 s[8:11], s[0:1], 16
    s_load_dwordx2 s[46:47], s[0:1], """ + ("32" if (os.environ.get("DBG") or os.environ.get("EPOCH")) else "40") + """
    v_lshrrev_b32 v1, 6, v0
    v_and_b32 v0, 63, v0
    s_nop 0
    v_readfirstlane_b32 s32, v1            ; wave id
    ; workgroup -> (group, head)
    s_and_b32 s33, s2, 7
    s_lshr_b32 s34, s2, 3
    s_lshl_b32 s33, s33, 3
    s_lshr_b32 s35, s34, 2
    s_add_u32 s33, s33, s35                ; kv group
    s_and_b32 s34, s34, 3
    s_lshl_b32 s35, s33, 2
    s_add_u32 s35, s35, s34                ; q head
    s_mul_i32 s30, s35, 81920              ; q/out head byte offset
    s_mul_i32 s36, s33, 81920              ; kv byte offset
    s_mov_b32 s28, """ + f32hex(c) + """
    s_mov_b32 s29, """ + f32hex(-c) + """
    s_and_b32 s37, s32, 3                  ; simd slot
    s_mul_i32 s38, s37, 80                 ; row base
    s_lshr_b32 s31, s32, 2
    s_xor_b32 s31, s31, 1                  ; 1 for B waves (w<4): T32 then T16
    ; T32 row0: B -> 80s ; A -> 80s+32
    s_lshl_b32 s39, s31, 5
    s_sub_u32 s39, 32, s39
    s_add_u32 s39, s39, s38                ; T32 row0
    s_add_u32 s40, s38, 64                 ; T16 row0
""" + lanedec + """
    ; ---- DMA voffsets:  KD=v40  VD=v1
    s_lshl_b32 s41, s37, 2
    v_add_u32 %7, s41, %4                  ; 4(w&3)+(i>>4)
    v_xor_b32 %7, %7, %3
    v_lshlrev_b32 %7, 4, %7
    v_lshl_or_b32 v40, %4, 8, %7
    s_and_b32 s41, s32, 1
    v_lshlrev_b32 %7, 1, %4
    v_or_b32 %7, s41, %7
    v_xor_b32 %7, %7, %3
    v_lshlrev_b32 %7, 4, %7
    v_lshl_or_b32 v1, %4, 8, %7
    s_waitcnt lgkmcnt(0)
    s_mov_b32 s12, s4
    s_and_b32 s13, s5, 0xffff
    s_mov_b32 s14, 20971520
    s_mov_b32 s15, 0x00020000
    s_mov_b32 s16, s6
    s_and_b32 s17, s7, 0xffff
    s_mov_b32 s18, 5242880
    s_mov_b32 s19, 0x00020000
    s_mov_b32 s20, s8
    s_and_b32 s21, s9, 0xffff
    s_mov_b32 s22, 5242880
    s_mov_b32 s23, 0x00020000
    s_mov_b32 s24, s10
    s_and_b32 s25, s11, 0xffff
    s_mov_b32 s26, 20971520
    s_mov_b32 s27, 0x00020000
    s_lshl_b32 s42, s32, 10                ; lds offset = 1024 w
    s_add_u32 s43, s36, s42                ; kv global offset
    s_lshl_b32 s56, s37, 10
    s_add_u32 s57, s36, s56
    s_xor_b32 s58, s31, 1
    s_lshl_b32 s58, s58, 15
    s_add_u32 s58, s58, s56
    s_lshl_b32 s54, s39, 8
    s_add_u32 s54, s54, s30                ; q32 global offset
    s_lshl_b32 s55, s40, 8
    s_add_u32 s55, s55, s30                ; q16 global offset
"""
    if os.environ.get("SPIN0"):
        A("    s_memrealtime s[94:95]")
    A(sub(pro, 32))
    if os.environ.get("EPOCH"):
        A("    s_mov_b32 s48, s46\n    s_and_b32 s49, s47, 0xffff\n    s_mov_b32 s50, 256\n    s_mov_b32 s51, 0x00020000")
        A("    s_not_b32 s53, s94\n    v_mov_b32 v50, s53\n    v_mov_b32 v51, 0")
        A("    s_mov_b64 exec, 1\n    buffer_atomic_umax v50, v51, s[48:51], 0 offen\n    s_mov_b64 exec, -1\n    s_waitcnt vmcnt(0)")
    if os.environ.get("SPIN") and not os.environ.get("SPIN0"):
        A("    s_memrealtime s[94:95]\n    s_waitcnt lgkmcnt(0)")
    if STAMP:
        A("".join("    s_mov_b64 s[%d:%d], 0\n" % (64 + 2 * k, 65 + 2 * k) for k in range(12)) + "    s_memrealtime s[88:89]\n" + stamp())
    def dma(ldsoff, sbase, goff, vreg, srd, fl):
        return ("s_add_u32 s44, s42, %d\n    s_mov_b32 m0, s44\n    s_add_u32 s45, %s, %d\n"
                "    buffer_load_dwordx4 v%d, s[%d:%d], s45 offen%s lds\n    " % (ldsoff, sbase, goff, vreg, srd, srd + 3, fl))
    def dma4(ldsoff, sbase, goff, vreg, srd, fl):
        return ("s_add_u32 s44, s56, %d\n    s_mov_b32 m0, s44\n    s_add_u32 s45, %s, %d\n"
                "    buffer_load_dwordx4 v%d, s[%d:%d], s45 offen%s lds\n    " % (ldsoff, sbase, goff, vreg, srd, srd + 3, fl))
    def kdma0():
        return "".join(dma(8192 * n, "s43", 8192 * n, KD, 16, KVF) for n in range(5))
    def kdma1():
        return "".join(dma4(40960 + 4096 * n, "s57", 40960 + 4096 * n, KD, 16, KVF) for n in range(10))
    def q32dma():
        return "".join(dma4(81920 + 4096 * n, "s54", 1024 * n, KD, 12, QF).replace("s56", "s58") for n in range(8))
    def q16dma():
        return "".join(dma4(81920 + 65536 + 4096 * m, "s55", 1024 * m, KD, 12, QF) for m in range(4))
    def vdma(ns):
        return "".join(dma4(81920 + 4096 * n, "s57", 4096 * n, VD, 20, KVF) for n in ns)
    A("    " + kdma0())
    if int(os.environ.get("BAR0", "1")): A("    s_barrier")
    A("    s_cmp_eq_u32 s31, 0")
    A("    s_cbranch_scc1 L_noq")
    A("    " + q32dma())
    A("    s_branch L_q2")
    A("L_noq:")
    A("    " + kdma1())
    A("L_q2:")
    if STAMP: A(stamp())
    addr32 = """
    ; ---- KA32
    v_xor_b32 %7, %2, %3
    v_lshlrev_b32 %7, 4, %7
    v_lshl_or_b32 v8, %1, 8, %7
    v_xor_b32 v9, 32, v8
    v_xor_b32 v10, 64, v8
    v_xor_b32 v11, 0x60, v8
    v_xor_b32 v12, 0x80, v8
    v_xor_b32 v13, 0xa0, v8
    v_xor_b32 v14, 0xc0, v8
    v_xor_b32 v15, 0xe0, v8
    ; ---- VA32: 81920 + (4h+r4)*256 + (8(c&1) + 2 r4 + (g'^h))*16 + 8(c>>1)
    v_lshl_add_u32 %7, %2, 2, %5           ; 4h+r4
    v_lshlrev_b32 %7, 8, %7
    v_and_b32 v16, 1, %6
    v_lshlrev_b32 v16, 3, v16
    v_lshl_add_u32 v16, %5, 1, v16
    v_and_b32 v17, 1, %4
    v_xor_b32 v17, v17, %2
    v_add_u32 v16, v16, v17
    v_lshl_add_u32 %7, v16, 4, %7
    v_lshrrev_b32 v16, 1, %6
    v_lshl_add_u32 %7, v16, 3, %7
    v_add_u32 v16, 0x14000, %7
    v_xor_b32 v17, 32, v16
    v_xor_b32 v18, 64, v16
    v_xor_b32 v19, 0x60, v16
    v_add_u32 %7, s39, %3
    v_lshlrev_b32 %7, 8, %7
    v_and_b32 v20, 1, %4
    v_lshl_add_u32 v20, v20, 1, %2
    v_lshl_add_u32 v20, v20, 4, %7
    v_add_u32 v21, 0x1000, v20
    ; ---- SEL (v26)
    v_xor_b32 %7, %5, %4
    v_and_b32 %7, 1, %7
    v_or_b32 %7, %7, %6
    v_mov_b32 v42, 0x3f803f80
    v_cmp_eq_u32 vcc, 0, %7
    v_cndmask_b32 v26, 0, v42, vcc
    s_lshl_b32 s41, s37, 2
    s_add_u32 s44, s58, 0x14000
    v_add_u32 v42, s41, %6                 ; x = 4(w&3) + (r&3)
    v_xor_b32 v41, v42, %2
    v_lshlrev_b32 v41, 4, v41
    v_lshl_add_u32 v41, %6, 8, v41
    v_lshrrev_b32 %7, 2, %1
    v_lshl_add_u32 v41, %7, 12, v41
    v_add_u32 v41, s44, v41
    v_add_u32 %7, s40, %3
    v_lshlrev_b32 %7, 8, %7
    v_lshl_add_u32 v2, %4, 4, %7
"""
    A(sub(addr32, 32))
    def q32read():
        t = ""
        for ks in range(8):
            d = QF32 + 4 * ks
            t += "v_xor_b32 v%d, 0x%x, v41\n    " % (d, 32 * ks)
        for ks in range(8):
            d = QF32 + 4 * ks
            t += "ds_read_b128 v[%d:%d], v%d\n    " % (d, d + 3, d)
        return t + "s_waitcnt lgkmcnt(0)\n    "
    def q16read():
        t = ""
        for ks in range(4):
            d = QF16L[ks]
            t += "v_xor_b32 v%d, 0x%x, v2\n    " % (d, 64 * ks)
        for ks in range(4):
            d = QF16L[ks]
            t += "ds_read_b128 v[%d:%d], v%d\n    " % (d, d + 3, d)
        return t + "s_waitcnt lgkmcnt(0)\n    "
    def pos(e, d):
        v = os.environ.get(e, d).split(",")
        return (v[0], int(v[1]), int(v[2]))
    X32 = int(os.environ.get('X32', '1'))
    A("    s_cmp_eq_u32 s31, 1")
    A("    s_cbranch_scc1 L_B")
    A("    s_waitcnt vmcnt(10)")
    A("    s_barrier")
    if STAMP: A(stamp())
    A("    " + q32dma())
    A("    s_waitcnt vmcnt(8)")
    A("    s_barrier")
    if STAMP: A(stamp())
    A("    " + vdma(range(8)) + vdma(range(16, 20)))
    A("    s_waitcnt vmcnt(12)")
    if STAMP: A(stamp())
    A("    " + q32read() + vdma(range(8, 16)))
    if int(os.environ.get("PRIOA", "0")): A("    s_setprio %d" % int(os.environ.get("PRIOA", "0")))
    PH = int(os.environ.get("PH", "0"))
    syA = [dict(at=pos("A2", "qk,1,30"), text="s_waitcnt vmcnt(0)\n    s_barrier")]
    prioA = prioB = prio16 = None
    if PH:
        A("    s_setprio %d" % int(os.environ.get("PQA", "2")))
        syA.append(dict(at=("pv", 0, 0), text="s_setprio 2", fence=True, reads=R(S0, 40) + R(S1, 40), nostamp=True))
        prioA = {"sm0": 0, "epi": 0}
        prioB = {"sm0": 0, "epi": 0} if os.environ.get("TPB", "2") != "3" else {"max1": 0, "epi": 0}
    PA = tile(True, syA, twopass=int(os.environ.get("TPA", "1")), vst=os.environ.get("VSTA", "").split(","), prio=prioA)
    seqA = finish(PA, NV32, X32)
    for i in seqA: A("    " + i.text)
    if STAMP: A(stamp())
    A("    s_branch L_fin")
    A("L_B:")
    if PH: A("    s_setprio 2")
    if int(os.environ.get("PRIO", "0")): A("    s_setprio %d" % int(os.environ.get("PRIO", "0")))
    stampn[0] = 2
    A("    s_waitcnt vmcnt(0)")
    if STAMP: A(stamp())
    A("    " + q32read())
    A("    s_barrier")
    if STAMP: A(stamp())
    TPB = int(os.environ.get("TPB", "2"))
    q16 = ""
    for ks in range(4):
        q16 += "buffer_load_dwordx4 v[%d:%d], v2, s[12:15], s30 offen offset:%d%s\n    " % (QF16L[ks], QF16L[ks] + 3, 64 * ks, _fl("Q16F", "none"))
    syB = [dict(at=("qk", 1, 0), text="s_barrier"),
           dict(at=("pv", 0, 0), text=q16 + "s_barrier" + ("\n    s_setprio 2" if PH else ""), fence=(TPB >= 2), reads=(R(S0, 40) + R(S1, 40) if TPB >= 2 else []))]
    P32 = tile(True, syB, twopass=TPB, vst=os.environ.get("VSTB", "").split(","), prio=prioB)
    seq32 = finish(P32, NV32, X32)
    for i in seq32: A("    " + i.text)
    if STAMP: A(stamp())
    if os.environ.get("PRIO16"): A("    s_setprio %d" % int(os.environ.get("PRIO16")))
    addr16 = lanedec + """
    ; ---- KA16 = ((r<<8) | ((g^r)<<4)) ^ (ks<<6)
    v_xor_b32 %7, %4, %3
    v_lshlrev_b32 %7, 4, %7
    v_lshl_or_b32 v208, %3, 8, %7
    v_xor_b32 v209, 64, v208
    v_xor_b32 v210, 0x80, v208
    v_xor_b32 v211, 0xc0, v208
    ; ---- VA16: 81920 + (4g+r4)*256 + (8c1 | 2 r4 | (g&1))*16 + 8 c0
    v_lshl_add_u32 %7, %4, 2, %5
    v_lshlrev_b32 %7, 8, %7
    v_lshrrev_b32 v212, 1, %6
    v_lshlrev_b32 v212, 3, v212
    v_lshl_add_u32 v212, %5, 1, v212
    v_and_b32 v213, 1, %4
    v_add_u32 v212, v212, v213
    v_lshl_add_u32 %7, v212, 4, %7
    v_and_b32 v212, 1, %6
    v_lshl_add_u32 %7, v212, 3, %7
    v_add_u32 v212, 0x14000, %7
    v_xor_b32 v213, 16, v212
    v_xor_b32 v214, 32, v212
    v_xor_b32 v215, 48, v212
    v_xor_b32 v216, 64, v212
    v_xor_b32 v217, 0x50, v212
    v_xor_b32 v218, 0x60, v212
    v_xor_b32 v219, 0x70, v212
    ; ---- OA16 = (row0+r16)*256 + 16 g
    v_add_u32 %7, s40, %3
    v_lshlrev_b32 %7, 8, %7
    v_lshl_add_u32 v220, %4, 4, %7
"""
    A(sub(addr16, 240))
    A("    s_waitcnt vmcnt(8)")
    TP16 = int(os.environ.get("TP16", "0"))
    sy16 = []
    if PH and TP16 == 2:
        A("    s_setprio 2")
        sy16 = [dict(at=("pv", 0, 0), text="s_setprio 2", fence=True, reads=R(S0_16, 20) + R(S1_16, 20), nostamp=True)]
        prio16 = {"sm0": 0, "epi": 0}
    P16 = tile(False, sy16, TP16, prio=prio16)
    seq16 = finish(P16, NV16, int(os.environ.get('X16', '3')))
    for i in seq16: A("    " + i.text)
    A("L_fin:")
    if os.environ.get("SPIN"):
        if os.environ.get("EPOCH"):
            A("    v_mov_b32 v51, 0\n    buffer_load_dword v50, v51, s[48:51], 0 offen sc0 sc1\n    s_waitcnt vmcnt(0)")
            A("    v_readfirstlane_b32 s53, v50\n    s_not_b32 s94, s53")
        A("L_sp:")
        A("    s_memrealtime s[96:97]\n    s_waitcnt lgkmcnt(0)")
        A("    s_sub_u32 s53, s96, s94")
        A("    s_cmp_lt_u32 s53, %d" % int(os.environ["SPIN"]))
        A("    s_cbranch_scc1 L_sp")
    if os.environ.get("DELAY"):
        A("    s_mov_b32 s53, %d" % int(os.environ["DELAY"]))
        A("L_dl:")
        A("    s_nop 15\n    s_nop 15\n    s_nop 15")
        A("    s_sub_u32 s53, s53, 1")
        A("    s_cmp_lg_u32 s53, 0")
        A("    s_cbranch_scc1 L_dl")
    if STAMP:
        stampn[0] = 11
        A(stamp())
        A("    s_waitcnt vmcnt(0)")
        A("    s_memrealtime s[90:91]")
        A("    s_memtime s[92:93]")
        A("    s_waitcnt lgkmcnt(0)")
        if os.environ.get("DBG"):
            sl = [1, 2, 3, 4, 5, 6, 11, 14]
            A("    s_cmp_lg_u32 s2, %d" % int(os.environ["DBG"]))
            A("    s_cbranch_scc1 L_end")
            A("    s_and_b32 s52, s32, 3")
            A("    s_cmp_lg_u32 s52, 0")
            A("    s_cbranch_scc1 L_end")
            A("    s_mov_b32 s48, s46")
            A("    s_and_b32 s49, s47, 0xffff")
            A("    s_mov_b32 s50, 256")
            A("    s_mov_b32 s51, 0x00020000")
            A("    s_lshl_b32 s52, s32, 3")
            A("    s_mov_b64 exec, 1")
            A("    v_mov_b32 v1, 0")
            for j, k in enumerate(sl):
                A("    s_sub_u32 s53, s%d, s64" % (64 + 2 * k))
                A("    v_mov_b32 v2, s53")
                A("    buffer_store_dword v2, v1, s[48:51], s52 offen offset:%d" % (4 * j))
            A("    s_branch L_end")
        A("    s_mov_b32 s48, s46")
        A("    s_and_b32 s49, s47, 0xffff")
        A("    s_mov_b32 s50, 0x1000000")
        A("    s_mov_b32 s51, 0x00020000")
        A("    s_lshl_b32 s52, s2, 3")
        A("    s_add_u32 s52, s52, s32")
        A("    s_mul_i32 s52, s52, 64")
        A("    s_mov_b64 exec, 1")
        A("    v_mov_b32 v1, 0")
        for k in range(15):
            A("    v_mov_b32 v2, s%d" % (64 + 2 * k))
            A("    buffer_store_dword v2, v1, s[48:51], s52 offen offset:%d" % (4 * k))
    A("L_end:")
    A("    s_endpgm")
    A('.section .rodata,"a"')
    A(".p2align 6")
    A(".amdhsa_kernel standalone__gqa_softmax__near_ridge_kernel")
    A("  .amdhsa_next_free_vgpr 256")
    A("  .amdhsa_next_free_sgpr 100")
    A("  .amdhsa_accum_offset 256")
    A("  .amdhsa_group_segment_fixed_size 0")
    A("  .amdhsa_kernarg_size 48")
    A("  .amdhsa_user_sgpr_count 2")
    A("  .amdhsa_user_sgpr_kernarg_segment_ptr 1")
    A("  .amdhsa_system_sgpr_workgroup_id_x 1")
    A(".end_amdhsa_kernel")
    open(OUT, "w").write("\n".join(L) + "\n")
    def stat(seq):
        from collections import Counter
        return Counter(i.kind for i in seq)
    print("T16", stat(seq16)); print("T32", stat(seq32))

main()
```
